```python
import torch

def _softmax(x, axis=-1):
    return torch.softmax(x, dim=axis)
def _gelu(x):
    return torch.nn.functional.gelu(x, approximate="tanh")
def _silu(x):
    return torch.nn.functional.silu(x)
def _sigmoid(x):
    return torch.sigmoid(x)
def _layernorm(x, axis=-1, eps=1e-5):
    m = x.mean(dim=axis, keepdim=True)
    v = x.var(dim=axis, keepdim=True, unbiased=False)
    return (x - m) / torch.sqrt(v + eps)
def _scatter_add(tgt, idx, src, axis=0):
    return tgt.clone().index_add_(axis, idx, src)
def _segment_sum(src, seg, n):
    out = torch.zeros((n,) + src.shape[1:], dtype=src.dtype)
    return out.index_add_(0, seg, src)
def _pad(x, pw):
    flat = tuple(v for pair in reversed(pw) for v in pair)
    return torch.nn.functional.pad(x, flat)

kernel_name = 'standalone__batchnorm__prompt'

def setup_inputs():

    _w = (lambda a: (lambda t: t.to(torch.bfloat16) if t.is_floating_point() else t)(torch.as_tensor(a)))
    B, S, C = 1, 2048, 1024
    K = 3
    return {
        "x": _w((lambda *s: torch.randn(*s, dtype=torch.bfloat16) * 0.05)(B, S, C)),
        "w": _w((lambda *s: torch.randn(*s, dtype=torch.bfloat16) * 0.05)(K, C, C) * (1.0 / (K * C) ** 0.5)),
        "mean": _w((lambda *s: torch.randn(*s, dtype=torch.bfloat16) * 0.05)(C) * 0.1),
        "var": _w(torch.abs((lambda *s: torch.randn(*s, dtype=torch.bfloat16) * 0.05)(C)) + 0.5),
        "g": _w((lambda *s: torch.randn(*s, dtype=torch.bfloat16) * 0.05)(C) + 1.0),
        "b": _w((lambda *s: torch.randn(*s, dtype=torch.bfloat16) * 0.05)(C) * 0.1),
    }

def reference(x, w, mean, var, g, b):
    K = 3
    P = K // 2
    S = x.shape[1]
    xp = _pad(x, ((0, 0), (P, P), (0, 0)))
    y = sum(torch.einsum('bsc,cd->bsd', xp[:, k:k + S, :], w[k]) for k in range(K))
    inv_std = 1.0 / torch.sqrt(var + 1e-5)
    y = (y - mean) * (g * inv_std) + b
    return _silu(y)
```

```python
KNAME = "standalone__batchnorm__prompt_kernel"
class Asm:
    def __init__(self):
        self.l = []
    def __call__(self, s):
        for line in s.strip("\n").split("\n"):
            self.l.append("    " + line.strip() if not line.strip().endswith(":") else line.strip())
    def text(self):
        return "\n".join(self.l) + "\n"

def wrap(body, grid, block, lds, vgpr=256, accum=256, sgpr=102, header=""):
    return f"""{header}; @launch grid=({grid},1,1) block=({block},1,1) lds={lds}
.amdgcn_target "amdgcn-amd-amdhsa--gfx950"
.text
.globl {KNAME}
.p2align 8
.type {KNAME},@function
{KNAME}:
{body}
.section .rodata,"a"
.p2align 6
.amdhsa_kernel {KNAME}
  .amdhsa_next_free_vgpr {vgpr}
  .amdhsa_next_free_sgpr {sgpr}
  .amdhsa_accum_offset {accum}
  .amdhsa_group_segment_fixed_size 0
  .amdhsa_kernarg_size 72
  .amdhsa_user_sgpr_count 2
  .amdhsa_user_sgpr_kernarg_segment_ptr 1
  .amdhsa_system_sgpr_workgroup_id_x 1
.end_amdhsa_kernel
"""

def stamp_begin(a):
    a("s_memrealtime s[90:91]\ns_memtime s[92:93]")

def stamp_end(a, extra=(), vbase=200, wsreg="s[88:89]"):
    a("s_memrealtime s[94:95]\ns_memtime s[96:97]\ns_getreg_b32 s98, hwreg(HW_REG_XCC_ID)\ns_waitcnt lgkmcnt(0)")
    regs = ["s90", "s91", "s94", "s95", "s92", "s93", "s96", "s97", "s98"] + list(extra)
    regs += ["0"] * (16 - len(regs))
    for i, r in enumerate(regs):
        a(f"v_mov_b32 v{vbase+i}, {r}")
    a(f"s_lshl_b32 s99, s2, 6\nv_mov_b32 v{vbase+16}, s99")
    a("s_mov_b64 exec, 1")
    for i in range(4):
        a(f"global_store_dwordx4 v{vbase+16}, v[{vbase+4*i}:{vbase+4*i+3}], {wsreg} offset:{16*i}")
    a("s_mov_b64 exec, -1")
```

```python
import sys
from asmlib import *

SLOT = 41216
WOFF = 130 * 128
NS = 3
EXCH = NS * SLOT
PARM = EXCH + 32768
LDS = PARM + 512
XB = {0: 0, 3: 34, 1: 66, 2: 98}

def gen(stamps=False, nomfma=False, noread=False, noepi=False):
    a = Asm()
    if stamps: stamp_begin(a)
    a("""
    s_cmp_ge_u32 s2, 256
    s_cbranch_scc1 L_end
    s_load_dwordx4 s[4:7], s[0:1], 0
    s_load_dwordx8 s[36:43], s[0:1], 16
    s_load_dwordx2 s[44:45], s[0:1], 48
    """)
    if stamps: a("s_load_dwordx2 s[88:89], s[0:1], 64")
    a("""
    v_lshrrev_b32 v1, 6, v0
    v_and_b32 v0, 63, v0
    v_readfirstlane_b32 s20, v1
    s_and_b32 s21, s2, 7
    s_lshr_b32 s22, s2, 3
    s_and_b32 s23, s21, 1
    s_lshl_b32 s23, s23, 3
    s_and_b32 s24, s22, 7
    s_add_u32 s23, s23, s24
    s_lshr_b32 s24, s21, 1
    s_lshl_b32 s24, s24, 2
    s_lshr_b32 s25, s22, 3
    s_add_u32 s24, s24, s25
    s_cmp_lt_u32 s20, 4
    s_cbranch_scc1 L_cons
    """)
    a("""
    s_sub_u32 s20, s20, 4
    v_lshrrev_b32 v2, 3, v0
    v_and_b32 v3, 7, v0
    v_lshrrev_b32 v4, 4, v0
    v_xor_b32 v5, v3, v4
    v_lshlrev_b32 v5, 4, v5
    v_lshl_add_u32 v5, v2, 13, v5
    s_lshl_b32 s25, s23, 18
    s_lshl_b32 s26, s20, 11
    s_add_u32 s26, s26, s25
    v_add_u32 v5, s26, v5
    v_xor_b32 v6, 64, v5
    v_add_u32 v6, 0x10000, v6
    v_add_u32 v8, 0x20000, v5
    v_add_u32 v9, 0x20000, v6
    v_and_b32 v7, 1, v4
    v_lshlrev_b32 v7, 2, v7
    v_xor_b32 v7, v7, v3
    v_lshlrev_b32 v7, 4, v7
    v_lshl_add_u32 v7, v2, 11, v7
    s_lshl_b32 s26, s24, 7
    s_lshl_b32 s27, s20, 15
    s_add_u32 s26, s26, s27
    v_add_u32 v7, s26, v7
    """)
    a("""
    s_and_b32 s26, s20, 1
    s_lshl_b32 s26, s26, 2
    v_add_u32 v10, s26, v0
    s_cmp_ge_u32 s20, 2
    s_cselect_b32 s26, 7, 0
    v_xor_b32 v10, s26, v10
    v_lshlrev_b32 v10, 4, v10
    s_add_u32 s27, s25, 0x40000
    s_sub_u32 s28, s25, 0x800
    s_cmp_eq_u32 s25, 0
    s_cselect_b32 s28, 0x80000000, s28
    s_cmp_ge_u32 s20, 2
    s_cselect_b32 s27, s28, s27
    v_add_u32 v10, s27, v10
    """)
    a(f"""
    s_cmp_eq_u32 s20, 1
    s_cselect_b32 s50, {XB[1]*128}, 0
    s_cmp_eq_u32 s20, 2
    s_cselect_b32 s50, {XB[2]*128}, s50
    s_cmp_eq_u32 s20, 3
    s_cselect_b32 s50, {XB[3]*128}, s50
    s_lshl_b32 s51, s20, 11
    s_add_u32 s51, s51, {WOFF}
    s_lshl_b32 s52, s20, 6
    s_add_u32 s52, s52, {32*128}
    s_lshl_b32 s26, s24, 7
    v_lshl_add_u32 v11, v0, 1, s26
    s_waitcnt lgkmcnt(0)
    s_mov_b32 s8, s4
    s_mov_b32 s9, s5
    s_mov_b32 s10, 0x400000
    s_mov_b32 s11, 0x20000
    s_mov_b32 s12, s6
    s_mov_b32 s13, s7
    s_mov_b32 s14, 0x600000
    s_mov_b32 s15, 0x20000
    s_mov_b32 s30, 0
    s_mov_b32 s31, 0
    s_mov_b32 s32, 0
    s_mov_b32 s33, 0
    global_load_ushort v12, v11, s[36:37]
    global_load_ushort v13, v11, s[38:39]
    global_load_ushort v14, v11, s[40:41]
    global_load_ushort v15, v11, s[42:43]
    """)
    a("L_issue:")
    def dma(m0, voff, srd, soff):
        a(f"s_add_u32 m0, s33, {m0}" if isinstance(m0, str) else f"s_add_u32 m0, m0, {m0}")
        if soff[1]:
            a(f"s_add_u32 s34, {soff[0]}, {soff[1]}")
            a(f"buffer_load_dwordx4 v{voff}, {srd}, s34 offen lds")
        else:
            a("s_nop 0")
            a(f"buffer_load_dwordx4 v{voff}, {srd}, {soff[0]} offen lds")
    X, W = "s[8:11]", "s[12:15]"
    dma("s50", 5, X, ("s31", 0))
    dma(1024, 6, X, ("s31", 0))
    dma(1024, 8, X, ("s31", 0))
    dma(1024, 9, X, ("s31", 0))
    a("s_mov_b64 exec, 15")
    dma("s52", 10, X, ("s31", 0))
    a("s_mov_b64 exec, -1")
    dma("s51", 7, W, ("s32", 0))
    dma(1024, 7, W, ("s32", 0x4000))
    dma(8192 - 1024, 7, W, ("s32", 0x200000))
    dma(1024, 7, W, ("s32", 0x204000))
    dma(8192 - 1024, 7, W, ("s32", 0x400000))
    dma(1024, 7, W, ("s32", 0x404000))
    a(f"""
    s_add_u32 s31, s31, 128
    s_add_u32 s32, s32, {64*2048}
    s_add_u32 s33, s33, {SLOT}
    s_cmp_ge_u32 s33, {SLOT*NS}
    s_cselect_b32 s33, 0, s33
    s_add_u32 s30, s30, 1
    s_cmp_lt_u32 s30, 3
    s_cbranch_scc1 L_issue
    s_cmp_gt_u32 s30, 3
    s_cbranch_scc1 L_lw
    s_waitcnt vmcnt(22)
    s_barrier
    L_lw:
    s_waitcnt vmcnt(11)
    s_barrier
    s_cmp_lt_u32 s30, 16
    s_cbranch_scc1 L_issue
    """)
    a(f"""
    s_waitcnt vmcnt(0)
    s_barrier
    v_lshlrev_b32 v12, 16, v12
    v_lshlrev_b32 v13, 16, v13
    v_lshlrev_b32 v14, 16, v14
    v_lshlrev_b32 v15, 16, v15
    v_add_f32 v13, 0x3727c5ac, v13
    v_rsq_f32 v13, v13
    v_lshlrev_b32 v16, 2, v0
    v_add_u32 v16, {PARM}, v16
    v_mul_f32 v13, v13, v14
    v_fma_f32 v15, -v12, v13, v15
    ds_write_b32 v16, v13
    ds_write_b32 v16, v15 offset:256
    s_waitcnt lgkmcnt(0)
    s_barrier
    s_endpgm
    """)
    ACC = 0
    XF = lambda buf, j: 64 + buf * 36 + (j + 1) * 4
    WF = lambda buf, k: 64 + buf * 36 + 24 + k * 4
    AX = lambda cls, u: 136 + cls * 2 + u
    AW = 142
    LANE = 143
    a("L_cons:")
    a(f"""
    v_mov_b32 v{LANE}, v0
    s_lshr_b32 s21, s20, 1
    s_and_b32 s22, s20, 1
    v_and_b32 v1, 31, v0
    v_lshrrev_b32 v2, 5, v0
    s_lshl_b32 s25, s21, 2
    v_add_u32 v2, s25, v2
    """)
    for cls, da in ((0, -1), (1, 0), (2, 1)):
        base = {0: XB[3], 1: 0, 2: XB[0]}[cls]
        a(f"""
        v_add_u32 v3, {da}, v1
        v_ashrrev_i32 v4, 1, v3
        v_and_b32 v4, 7, v4
        v_xor_b32 v4, v4, v2
        v_lshlrev_b32 v4, 4, v4
        v_add_u32 v3, {base}, v3
        v_lshl_add_u32 v{AX(cls,0)}, v3, 7, v4
        v_xor_b32 v{AX(cls,1)}, 32, v{AX(cls,0)}
        """)
    a(f"""
    v_lshrrev_b32 v2, 5, v0
    v_bfe_u32 v3, v0, 4, 1
    v_bfe_u32 v4, v0, 2, 2
    v_and_b32 v5, 1, v0
    v_bfe_u32 v6, v0, 1, 1
    v_lshlrev_b32 v5, 2, v5
    v_lshl_add_u32 v5, v3, 1, v5
    v_add_u32 v5, v5, v6
    v_lshlrev_b32 v5, 3, v5
    v_lshrrev_b32 v6, 1, v4
    v_xor_b32 v6, s22, v6
    v_lshl_add_u32 v5, v6, 6, v5
    v_lshl_add_u32 v4, v2, 3, v4
    s_lshl_b32 s25, s21, 5
    v_add_u32 v4, s25, v4
    v_lshl_add_u32 v5, v4, 7, v5
    v_add_u32 v{AW}, {WOFF}, v5
    """)
    for r in range(64): a(f"v_mov_b32 v{ACC+r}, 0")
    a(f"s_mov_b32 s30, 0\ns_mov_b32 s33, 0\ns_mov_b32 s35, {SLOT}\ns_waitcnt lgkmcnt(0)")
    a(f"""
    s_mov_b32 s8, s44
    s_mov_b32 s9, s45
    s_mov_b32 s10, 0x400000
    s_mov_b32 s11, 0x20000
    """)
    def reads(buf, u):
        L = []
        def xr(j):
            cls = 0 if j == -1 else (2 if j == 4 else 1)
            off = XB[j] * 128 if cls == 1 else 0
            r = XF(buf, j)
            return f"ds_read_b128 v[{r}:{r+3}], v{AX(cls,u)} offset:{off}"
        def wr(k, e):
            r = WF(buf, k) + 2 * e
            return f"ds_read_b64_tr_b16 v[{r}:{r+1}], v{AW} offset:{k*8192 + u*2048 + e*512}"
        L = [wr(0,0), wr(0,1), xr(-1), xr(0), xr(1), xr(2), wr(1,0), wr(1,1), xr(3), wr(2,0), wr(2,1), xr(4)]
        return [] if noread else L
    def mfmas(buf):
        L = []
        for k in range(3):
            for j in range(4):
                c = ACC + 16 * j; w_ = WF(buf, k); x_ = XF(buf, j + k - 1)
                L.append(f"v_mfma_f32_32x32x16_bf16 v[{c}:{c+15}], v[{w_}:{w_+3}], v[{x_}:{x_+3}], v[{c}:{c+15}]")
        return ["s_nop 0"] * 12 if nomfma else L
    def interleave(M, R, extra_at=None):
        R = list(R)
        for n, m in enumerate(M):
            a(m)
            for _ in range(2):
                if R: a(R.pop(0))
            if extra_at and n in extra_at:
                for e in extra_at[n]: a(e)
    a("s_barrier")
    if stamps: a("s_memtime s[80:81]")
    for r in reads(0, 0): a(r)
    a("L_cloop:")
    a("s_waitcnt lgkmcnt(0)")
    upd = [f"v_add_u32 v{r}, s34, v{r}" for r in [AX(0,0), AX(0,1), AX(1,0), AX(1,1), AX(2,0), AX(2,1), AW]]
    interleave(mfmas(0), reads(1, 1), {
        6: [f"s_add_u32 s33, s33, 1", "s_cmp_eq_u32 s33, 3", f"s_cselect_b32 s34, {(-2*SLOT) & 0xffffffff}, s35", "s_cselect_b32 s33, 0, s33"],
        7: upd[:4], 8: upd[4:], 9: ["s_add_u32 s30, s30, 1", "s_cmp_eq_u32 s30, 16", "s_waitcnt lgkmcnt(0)"],
        })
    a("s_cbranch_scc1 L_tail\ns_barrier")
    interleave(mfmas(1), reads(0, 0))
    a("s_branch L_cloop")
    a("L_tail:")
    for m in mfmas(1): a(m)
    if stamps: a("s_memtime s[82:83]")
    T = 64
    a(f"""
    s_xor_b32 s25, s20, 2
    s_lshl_b32 s25, s25, 13
    s_add_u32 s25, s25, {EXCH}
    v_lshl_add_u32 v130, v{LANE}, 4, s25
    s_lshl_b32 s25, s20, 13
    s_add_u32 s25, s25, {EXCH}
    v_lshl_add_u32 v131, v{LANE}, 4, s25
    v_lshrrev_b32 v132, 5, v{LANE}
    s_lshl_b32 s25, s22, 7
    s_add_u32 s25, s25, {PARM}
    v_lshl_add_u32 v132, v132, 6, s25
    s_cmp_eq_u32 s21, 1
    s_nop 7
    s_cbranch_scc1 L_e1
    """)
    for v in range(2):
        send = 32 if v == 0 else 0
        keep = 0 if v == 0 else 32
        for n in range(8):
            a(f"ds_write_b128 v130, v[{ACC+send+4*n}:{ACC+send+4*n+3}] offset:{n*1024}")
        a("s_waitcnt lgkmcnt(0)\ns_barrier")
        for n in range(8):
            a(f"ds_read_b128 v[{T+4*n}:{T+4*n+3}], v131 offset:{n*1024}")
        for n in range(4):
            a(f"ds_read_b128 v[{96+4*n}:{96+4*n+3}], v132 offset:{n*16}")
            a(f"ds_read_b128 v[{112+4*n}:{112+4*n+3}], v132 offset:{256+n*16}")
        a("s_waitcnt lgkmcnt(8)")
        for n in range(16):
            a(f"v_pk_add_f32 v[{T+2*n}:{T+2*n+1}], v[{T+2*n}:{T+2*n+1}], v[{ACC+keep+2*n}:{ACC+keep+2*n+1}]")
        if v == 0: a("s_branch L_e2\nL_e1:")
    a("L_e2:")
    a(f"""
    v_and_b32 v1, 31, v{LANE}
    v_lshrrev_b32 v2, 5, v{LANE}
    v_lshlrev_b32 v1, 13, v1
    v_lshl_add_u32 v1, v2, 5, v1
    s_lshl_b32 s25, s23, 18
    s_lshl_b32 s26, s21, 12
    s_add_u32 s25, s25, s26
    s_lshl_b32 s26, s24, 7
    s_add_u32 s25, s25, s26
    s_lshl_b32 s26, s22, 6
    s_add_u32 s25, s25, s26
    v_add_u32 v1, s25, v1
    s_mov_b32 s26, 0xbfb8aa3b
    s_mov_b32 s27, 0xbfb8aa3b
    s_waitcnt lgkmcnt(0)
    """)
    for jj in range(2):
        for n in range(8):
            y = T + 16 * jj + 2 * n; z = 8 + 2 * n
            a(f"v_pk_fma_f32 v[{y}:{y+1}], v[{y}:{y+1}], v[{96+2*n}:{97+2*n}], v[{112+2*n}:{113+2*n}]")
        for n in range(8):
            y = T + 16 * jj + 2 * n; z = 8 + 2 * n
            a(f"v_pk_mul_f32 v[{z}:{z+1}], v[{y}:{y+1}], s[26:27]")
        for n in range(16): a(f"v_exp_f32 v{8+n}, v{8+n}")
        for n in range(8):
            z = 8 + 2 * n
            a(f"v_pk_add_f32 v[{z}:{z+1}], v[{z}:{z+1}], 1.0 op_sel_hi:[1,0]")
        for n in range(16): a(f"v_rcp_f32 v{8+n}, v{8+n}")
        for n in range(8):
            y = T + 16 * jj + 2 * n; z = 8 + 2 * n
            a(f"v_pk_mul_f32 v[{y}:{y+1}], v[{y}:{y+1}], v[{z}:{z+1}]")
        o = 32 + 8 * jj
        for n in range(8):
            y = T + 16 * jj + 2 * n
            a(f"v_cvt_pk_bf16_f32 v{o+n}, v{y}, v{y+1}")
        a(f"buffer_store_dwordx4 v[{o}:{o+3}], v1, s[8:11], 0 offen offset:{jj*2048}")
        a(f"buffer_store_dwordx4 v[{o+4}:{o+7}], v1, s[8:11], 0 offen offset:{jj*2048+16}")
    if stamps:
        a("s_memtime s[84:85]\ns_waitcnt vmcnt(0)\ns_cmp_lg_u32 s20, 0\ns_cbranch_scc1 L_end\ns_waitcnt lgkmcnt(0)")
        a("s_sub_u32 s80, s80, s92\ns_sub_u32 s82, s82, s92\ns_sub_u32 s84, s84, s92")
        stamp_end(a, extra=["s80", "s82", "s84"], vbase=100)
    a("L_end:\ns_endpgm")
    hdr = open("standalone__batchnorm__prompt.s.ref").read().split("; Override")[0]
    return wrap(a.text(), 256, 512, LDS, vgpr=144, accum=144, header=hdr)

if __name__ == "__main__":
    open("k1.s", "w").write(gen())
    open("k1_st.s", "w").write(gen(stamps=True))
    open("k1_st_nomfma.s", "w").write(gen(stamps=True, nomfma=True))
    open("k1_st_noread.s", "w").write(gen(stamps=True, noread=True))
```

```python
import sys
from asmlib import *

SLOT = 41216
WOFF = 130 * 128
NS = 3
EXCH = NS * SLOT
PARM = EXCH + 32768
LDS = PARM + 512
XB = {0: 0, 3: 34, 1: 66, 2: 98}

def gen(stamps=False, nomfma=False, noread=False, noepi=False, probe=None):
    a = Asm()
    if probe: a('s_memrealtime s[70:71]')
    if stamps: stamp_begin(a)
    a("""
    s_cmp_ge_u32 s2, 256
    s_cbranch_scc1 L_end
    s_load_dwordx4 s[4:7], s[0:1], 0
    s_load_dwordx8 s[36:43], s[0:1], 16
    s_load_dwordx2 s[44:45], s[0:1], 48
    """)
    if stamps: a("s_load_dwordx2 s[88:89], s[0:1], 64")
    a("""
    v_lshrrev_b32 v1, 6, v0
    v_and_b32 v0, 63, v0
    v_readfirstlane_b32 s20, v1
    s_and_b32 s21, s2, 7
    s_lshr_b32 s22, s2, 3
    s_and_b32 s23, s21, 1
    s_lshl_b32 s23, s23, 3
    s_and_b32 s24, s22, 7
    s_add_u32 s23, s23, s24
    s_lshr_b32 s24, s21, 1
    s_lshl_b32 s24, s24, 2
    s_lshr_b32 s25, s22, 3
    s_add_u32 s24, s24, s25
    s_cmp_lt_u32 s20, 4
    s_cbranch_scc1 L_cons
    """)
    a("""
    s_sub_u32 s20, s20, 4
    v_lshrrev_b32 v2, 3, v0
    v_and_b32 v3, 7, v0
    v_lshrrev_b32 v4, 4, v0
    v_xor_b32 v5, v3, v4
    v_lshlrev_b32 v5, 4, v5
    v_lshl_add_u32 v5, v2, 13, v5
    s_lshl_b32 s25, s23, 18
    s_lshl_b32 s26, s20, 11
    s_add_u32 s26, s26, s25
    v_add_u32 v5, s26, v5
    v_xor_b32 v6, 64, v5
    v_add_u32 v6, 0x10000, v6
    v_add_u32 v8, 0x20000, v5
    v_add_u32 v9, 0x20000, v6
    v_and_b32 v7, 1, v4
    v_lshlrev_b32 v7, 2, v7
    v_xor_b32 v7, v7, v3
    v_lshlrev_b32 v7, 4, v7
    v_lshl_add_u32 v7, v2, 11, v7
    s_lshl_b32 s26, s24, 7
    s_lshl_b32 s27, s20, 15
    s_add_u32 s26, s26, s27
    v_add_u32 v7, s26, v7
    """)
    a("""
    s_and_b32 s26, s20, 1
    s_lshl_b32 s26, s26, 2
    v_add_u32 v10, s26, v0
    s_cmp_ge_u32 s20, 2
    s_cselect_b32 s26, 7, 0
    v_xor_b32 v10, s26, v10
    v_lshlrev_b32 v10, 4, v10
    s_add_u32 s27, s25, 0x40000
    s_sub_u32 s28, s25, 0x800
    s_cmp_eq_u32 s25, 0
    s_cselect_b32 s28, 0x80000000, s28
    s_cmp_ge_u32 s20, 2
    s_cselect_b32 s27, s28, s27
    v_add_u32 v10, s27, v10
    """)
    a(f"""
    s_cmp_eq_u32 s20, 1
    s_cselect_b32 s50, {XB[1]*128}, 0
    s_cmp_eq_u32 s20, 2
    s_cselect_b32 s50, {XB[2]*128}, s50
    s_cmp_eq_u32 s20, 3
    s_cselect_b32 s50, {XB[3]*128}, s50
    s_lshl_b32 s51, s20, 11
    s_add_u32 s51, s51, {WOFF}
    s_lshl_b32 s52, s20, 6
    s_add_u32 s52, s52, {32*128}
    s_lshl_b32 s26, s24, 7
    v_lshl_add_u32 v11, v0, 1, s26
    s_waitcnt lgkmcnt(0)
    s_mov_b32 s8, s4
    s_mov_b32 s9, s5
    s_mov_b32 s10, 0x400000
    s_mov_b32 s11, 0x20000
    s_mov_b32 s12, s6
    s_mov_b32 s13, s7
    s_mov_b32 s14, 0x600000
    s_mov_b32 s15, 0x20000
    s_mov_b32 s30, 0
    s_mov_b32 s31, 0
    s_mov_b32 s32, 0
    s_mov_b32 s33, 0
    global_load_ushort v12, v11, s[36:37]
    global_load_ushort v13, v11, s[38:39]
    global_load_ushort v14, v11, s[40:41]
    global_load_ushort v15, v11, s[42:43]
    """)
    a("L_issue:")
    def dma(m0, voff, srd, soff):
        a(f"s_add_u32 m0, s33, {m0}" if isinstance(m0, str) else f"s_add_u32 m0, m0, {m0}")
        if soff[1]:
            a(f"s_add_u32 s34, {soff[0]}, {soff[1]}")
            a(f"buffer_load_dwordx4 v{voff}, {srd}, s34 offen lds")
        else:
            a("s_nop 0")
            a(f"buffer_load_dwordx4 v{voff}, {srd}, {soff[0]} offen lds")
    X, W = "s[8:11]", "s[12:15]"
    dma("s50", 5, X, ("s31", 0))
    dma(1024, 6, X, ("s31", 0))
    dma(1024, 8, X, ("s31", 0))
    dma(1024, 9, X, ("s31", 0))
    a("s_mov_b64 exec, 15")
    dma("s52", 10, X, ("s31", 0))
    a("s_mov_b64 exec, -1")
    dma("s51", 7, W, ("s32", 0))
    dma(1024, 7, W, ("s32", 0x4000))
    dma(8192 - 1024, 7, W, ("s32", 0x200000))
    dma(1024, 7, W, ("s32", 0x204000))
    dma(8192 - 1024, 7, W, ("s32", 0x400000))
    dma(1024, 7, W, ("s32", 0x404000))
    a(f"""
    s_add_u32 s31, s31, 128
    s_add_u32 s32, s32, {64*2048}
    s_add_u32 s33, s33, {SLOT}
    s_cmp_ge_u32 s33, {SLOT*NS}
    s_cselect_b32 s33, 0, s33
    s_add_u32 s30, s30, 1
    s_cmp_lt_u32 s30, 3
    s_cbranch_scc1 L_issue
    s_cmp_gt_u32 s30, 3
    s_cbranch_scc1 L_lw
    s_waitcnt vmcnt(22)
    s_barrier
    L_lw:
    s_waitcnt vmcnt(11)
    s_barrier
    s_cmp_lt_u32 s30, 16
    s_cbranch_scc1 L_issue
    """)
    a(f"""
    s_waitcnt vmcnt(0)
    s_barrier
    v_lshlrev_b32 v12, 16, v12
    v_lshlrev_b32 v13, 16, v13
    v_lshlrev_b32 v14, 16, v14
    v_lshlrev_b32 v15, 16, v15
    v_add_f32 v13, 0x3727c5ac, v13
    v_rsq_f32 v13, v13
    v_lshlrev_b32 v16, 2, v0
    v_add_u32 v16, {PARM}, v16
    v_mul_f32 v13, v13, v14
    v_fma_f32 v15, -v12, v13, v15
    ds_write_b32 v16, v13
    ds_write_b32 v16, v15 offset:256
    s_waitcnt lgkmcnt(0)
    s_barrier
    s_endpgm
    """)
    ACC = 0
    XF = lambda buf, j: 64 + buf * 36 + (j + 1) * 4
    WF = lambda buf, k: 64 + buf * 36 + 24 + k * 4
    AX = lambda cls, u: 136 + cls * 2 + u
    AW = 142
    LANE = 143
    a("L_cons:")
    a(f"""
    v_mov_b32 v{LANE}, v0
    s_lshr_b32 s21, s20, 1
    s_and_b32 s22, s20, 1
    v_and_b32 v1, 31, v0
    v_lshrrev_b32 v2, 5, v0
    s_lshl_b32 s25, s21, 2
    v_add_u32 v2, s25, v2
    """)
    for cls, da in ((0, -1), (1, 0), (2, 1)):
        base = {0: XB[3], 1: 0, 2: XB[0]}[cls]
        a(f"""
        v_add_u32 v3, {da}, v1
        v_ashrrev_i32 v4, 1, v3
        v_and_b32 v4, 7, v4
        v_xor_b32 v4, v4, v2
        v_lshlrev_b32 v4, 4, v4
        v_add_u32 v3, {base}, v3
        v_lshl_add_u32 v{AX(cls,0)}, v3, 7, v4
        v_xor_b32 v{AX(cls,1)}, 32, v{AX(cls,0)}
        """)
    a(f"""
    v_lshrrev_b32 v2, 5, v0
    v_bfe_u32 v3, v0, 4, 1
    v_bfe_u32 v4, v0, 2, 2
    v_and_b32 v5, 1, v0
    v_bfe_u32 v6, v0, 1, 1
    v_lshlrev_b32 v5, 2, v5
    v_lshl_add_u32 v5, v3, 1, v5
    v_add_u32 v5, v5, v6
    v_lshlrev_b32 v5, 3, v5
    v_lshrrev_b32 v6, 1, v4
    v_xor_b32 v6, s22, v6
    v_lshl_add_u32 v5, v6, 6, v5
    v_lshl_add_u32 v4, v2, 3, v4
    s_lshl_b32 s25, s21, 5
    v_add_u32 v4, s25, v4
    v_lshl_add_u32 v5, v4, 7, v5
    v_add_u32 v{AW}, {WOFF}, v5
    """)
    for r in range(64): a(f"v_mov_b32 v{ACC+r}, 0")
    a(f"s_mov_b32 s30, 0\ns_mov_b32 s33, 0\ns_mov_b32 s35, {SLOT}\ns_waitcnt lgkmcnt(0)")
    a(f"""
    s_mov_b32 s8, s44
    s_mov_b32 s9, s45
    s_mov_b32 s10, 0x400000
    s_mov_b32 s11, 0x20000
    """)
    def reads(buf, u):
        L = []
        def xr(j):
            cls = 0 if j == -1 else (2 if j == 4 else 1)
            off = XB[j] * 128 if cls == 1 else 0
            r = XF(buf, j)
            return f"ds_read_b128 v[{r}:{r+3}], v{AX(cls,u)} offset:{off}"
        def wr(k, e):
            r = WF(buf, k) + 2 * e
            return f"ds_read_b64_tr_b16 v[{r}:{r+1}], v{AW} offset:{k*8192 + u*2048 + e*512}"
        L = [wr(0,0), wr(0,1), xr(-1), xr(0), xr(1), xr(2), wr(1,0), wr(1,1), xr(3), wr(2,0), wr(2,1), xr(4)]
        return [] if noread else L
    def mfmas(buf):
        L = []
        for k in range(3):
            for j in range(4):
                c = ACC + 16 * j; w_ = WF(buf, k); x_ = XF(buf, j + k - 1)
                L.append(f"v_mfma_f32_32x32x16_bf16 v[{c}:{c+15}], v[{w_}:{w_+3}], v[{x_}:{x_+3}], v[{c}:{c+15}]")
        return ["s_nop 0"] * 12 if nomfma else L
    def interleave(M, R, extra_at=None):
        R = list(R)
        for n, m in enumerate(M):
            a(m)
            for _ in range(2):
                if R: a(R.pop(0))
            if extra_at and n in extra_at:
                for e in extra_at[n]: a(e)
    a("s_barrier")
    if stamps: a("s_memtime s[80:81]")
    if probe: a("s_memrealtime s[72:73]")
    for r in reads(0, 0): a(r)
    a("L_cloop:")
    a("s_waitcnt lgkmcnt(0)")
    upd = [f"v_add_u32 v{r}, s34, v{r}" for r in [AX(0,0), AX(0,1), AX(1,0), AX(1,1), AX(2,0), AX(2,1), AW]]
    interleave(mfmas(0), reads(1, 1), {
        6: [f"s_add_u32 s33, s33, 1", "s_cmp_eq_u32 s33, 3", f"s_cselect_b32 s34, {(-2*SLOT) & 0xffffffff}, s35", "s_cselect_b32 s33, 0, s33"],
        7: upd[:4], 8: upd[4:], 9: ["s_add_u32 s30, s30, 1", "s_cmp_eq_u32 s30, 16", "s_waitcnt lgkmcnt(0)"],
        })
    a("s_cbranch_scc1 L_tail\ns_barrier")
    interleave(mfmas(1), reads(0, 0))
    a("s_branch L_cloop")
    a("L_tail:")
    for m in mfmas(1): a(m)
    if stamps: a("s_memtime s[82:83]")
    if probe: a("s_memrealtime s[74:75]")
    T = 64
    a(f"""
    s_xor_b32 s25, s20, 2
    s_lshl_b32 s25, s25, 13
    s_add_u32 s25, s25, {EXCH}
    v_lshl_add_u32 v130, v{LANE}, 4, s25
    s_lshl_b32 s25, s20, 13
    s_add_u32 s25, s25, {EXCH}
    v_lshl_add_u32 v131, v{LANE}, 4, s25
    v_lshrrev_b32 v132, 5, v{LANE}
    s_lshl_b32 s25, s22, 7
    s_add_u32 s25, s25, {PARM}
    v_lshl_add_u32 v132, v132, 6, s25
    s_cmp_eq_u32 s21, 1
    s_nop 7
    s_cbranch_scc1 L_e1
    """)
    for v in range(2):
        send = 32 if v == 0 else 0
        keep = 0 if v == 0 else 32
        for n in range(8):
            a(f"ds_write_b128 v130, v[{ACC+send+4*n}:{ACC+send+4*n+3}] offset:{n*1024}")
        a("s_waitcnt lgkmcnt(0)\ns_barrier")
        for n in range(8):
            a(f"ds_read_b128 v[{T+4*n}:{T+4*n+3}], v131 offset:{n*1024}")
        for n in range(4):
            a(f"ds_read_b128 v[{96+4*n}:{96+4*n+3}], v132 offset:{n*16}")
            a(f"ds_read_b128 v[{112+4*n}:{112+4*n+3}], v132 offset:{256+n*16}")
        a("s_waitcnt lgkmcnt(8)")
        for n in range(16):
            a(f"v_pk_add_f32 v[{T+2*n}:{T+2*n+1}], v[{T+2*n}:{T+2*n+1}], v[{ACC+keep+2*n}:{ACC+keep+2*n+1}]")
        if v == 0: a("s_branch L_e2\nL_e1:")
    a("L_e2:")
    a(f"""
    v_and_b32 v1, 31, v{LANE}
    v_lshrrev_b32 v2, 5, v{LANE}
    v_lshlrev_b32 v1, 13, v1
    v_lshl_add_u32 v1, v2, 5, v1
    s_lshl_b32 s25, s23, 18
    s_lshl_b32 s26, s21, 12
    s_add_u32 s25, s25, s26
    s_lshl_b32 s26, s24, 7
    s_add_u32 s25, s25, s26
    s_lshl_b32 s26, s22, 6
    s_add_u32 s25, s25, s26
    v_add_u32 v1, s25, v1
    s_mov_b32 s26, 0xbfb8aa3b
    s_mov_b32 s27, 0xbfb8aa3b
    s_waitcnt lgkmcnt(0)
    """)
    for jj in range(2):
        for n in range(8):
            y = T + 16 * jj + 2 * n; z = 8 + 2 * n
            a(f"v_pk_fma_f32 v[{y}:{y+1}], v[{y}:{y+1}], v[{96+2*n}:{97+2*n}], v[{112+2*n}:{113+2*n}]")
        for n in range(8):
            y = T + 16 * jj + 2 * n; z = 8 + 2 * n
            a(f"v_pk_mul_f32 v[{z}:{z+1}], v[{y}:{y+1}], s[26:27]")
        for n in range(16): a(f"v_exp_f32 v{8+n}, v{8+n}")
        for n in range(8):
            z = 8 + 2 * n
            a(f"v_pk_add_f32 v[{z}:{z+1}], v[{z}:{z+1}], 1.0 op_sel_hi:[1,0]")
        for n in range(16): a(f"v_rcp_f32 v{8+n}, v{8+n}")
        for n in range(8):
            y = T + 16 * jj + 2 * n; z = 8 + 2 * n
            a(f"v_pk_mul_f32 v[{y}:{y+1}], v[{y}:{y+1}], v[{z}:{z+1}]")
        o = 32 + 8 * jj
        for n in range(8):
            y = T + 16 * jj + 2 * n
            a(f"v_cvt_pk_bf16_f32 v{o+n}, v{y}, v{y+1}")
        a(f"buffer_store_dwordx4 v[{o}:{o+3}], v1, s[8:11], 0 offen offset:{jj*2048}")
        a(f"buffer_store_dwordx4 v[{o+4}:{o+7}], v1, s[8:11], 0 offen offset:{jj*2048+16}")
    if stamps:
        a("s_memtime s[84:85]\ns_waitcnt vmcnt(0)\ns_cmp_lg_u32 s20, 0\ns_cbranch_scc1 L_end\ns_waitcnt lgkmcnt(0)")
        a("s_sub_u32 s80, s80, s92\ns_sub_u32 s82, s82, s92\ns_sub_u32 s84, s84, s92")
        stamp_end(a, extra=["s80", "s82", "s84"], vbase=100)
    if probe:
        lo, hi = {"all": ("s70", "s76"), "pro": ("s70", "s72"), "main": ("s72", "s74"), "epi": ("s74", "s76")}[probe]
        a(f"""
        s_waitcnt vmcnt(0)
        s_memrealtime s[76:77]
        s_waitcnt lgkmcnt(0)
        s_sub_u32 s78, {hi}, {lo}
        s_lshl_b32 s78, s78, 1
        s_min_u32 s78, s78, 20000
        L_probe:
        s_memrealtime s[60:61]
        s_waitcnt lgkmcnt(0)
        s_sub_u32 s62, s60, s76
        s_cmp_lt_u32 s62, s78
        s_cbranch_scc1 L_probe
        """)
    a("L_end:\ns_endpgm")
    hdr = open("standalone__batchnorm__prompt.s.ref").read().split("; Override")[0]
    return wrap(a.text(), 256, 512, LDS, vgpr=144, accum=144, header=hdr)

if __name__ == "__main__":
    open("k1.s", "w").write(gen())
    open("k1_st.s", "w").write(gen(stamps=True))
    open("k1_st_nomfma.s", "w").write(gen(stamps=True, nomfma=True))
    open("k1_st_noread.s", "w").write(gen(stamps=True, noread=True))
    for p in ("all", "pro", "main", "epi"):
        open(f"k1_probe_{p}.s", "w").write(gen(probe=p))
```

```python
import sys, os
from asmlib import *

SLOT = 41216
WOFF = 130 * 128
NS = 3
PARM = 131072
LDS = PARM + 512

def sel4(a, dst, vals, idx="s20"):
    a(f"s_mov_b32 {dst}, {vals[0]}")
    for i in range(1, 4):
        if vals[i] != vals[i-1]:
            a(f"s_cmp_ge_u32 {idx}, {i}\ns_cselect_b32 {dst}, {vals[i]}, {dst}")

def sched_tables(mode):
    if mode == "none":
        return [list(range(16))] * 4
    if mode == "rot":
        return [[(t + 4 * q) & 15 for t in range(16)] for q in range(4)]
    if mode == "grp":
        return [[(t & ~3) | ((t + q) & 3) for t in range(16)] for q in range(4)]
    if mode == "s2":
        T = []
        for q in range(4):
            avail_time = {s: 0 for s in range(4)}
            for s in range(4, 16): avail_time[s] = s - 3
            order = []; done = set()
            for slot in range(16):
                if slot == 0: pick = q
                elif slot + 3 < 16 and ((slot + 3) & 3) == q: pick = slot + 3
                else:
                    c = [s for s in range(16) if s not in done and avail_time[s] < slot and not ((s & 3) == q)]
                    pick = min(c)
                order.append(pick); done.add(pick)
            assert sorted(order) == list(range(16)), order
            T.append(order)
        return T
    raise ValueError(mode)

def gen(shape=32, ks=2, stamps=False, nomfma=False, noread=False, sched="none", ntx="", ntw="", nto="", probe=None, order="k", rper=None):
    TM = shape
    KC = 2 if shape == 32 else 4
    Mw = 64 if ks == 1 else 128
    Nw = 64 if ks == 4 else 32
    R = Mw // TM
    A = 128 // R
    NT = Nw // TM
    NK = (8 // KC) // ks
    CR = 16 if shape == 32 else 4
    XB = {0: 0, R - 1: A + 2}
    for n, b in enumerate(range(1, R - 1)): XB[b] = 2 * A + 2 + n * A
    a = Asm()
    if probe: a('s_memrealtime s[70:71]')
    if stamps: stamp_begin(a)
    a("""
    s_cmp_ge_u32 s2, 256
    s_cbranch_scc1 L_end
    s_load_dwordx4 s[4:7], s[0:1], 0
    s_load_dwordx8 s[36:43], s[0:1], 16
    s_load_dwordx2 s[44:45], s[0:1], 48
    """)
    if stamps: a("s_load_dwordx2 s[88:89], s[0:1], 64")
    a("""
    v_lshrrev_b32 v1, 6, v0
    v_and_b32 v0, 63, v0
    v_readfirstlane_b32 s19, v1
    s_and_b32 s21, s2, 7
    s_lshr_b32 s22, s2, 3
    s_and_b32 s23, s21, 1
    s_lshl_b32 s23, s23, 3
    s_and_b32 s24, s22, 7
    s_add_u32 s23, s23, s24
    s_lshr_b32 s24, s21, 1
    s_lshl_b32 s24, s24, 2
    s_lshr_b32 s25, s22, 3
    s_add_u32 s24, s24, s25
    s_and_b32 s20, s19, 3
    s_cmp_lt_u32 s19, 4
    s_cbranch_scc1 L_cons
    """)
    PB = A // 8
    lg = {2: 12, 4: 13, 8: 14}[R]
    a(f"""
    v_lshrrev_b32 v2, 3, v0
    v_and_b32 v3, 7, v0
    v_lshrrev_b32 v4, 4, v0
    v_xor_b32 v5, v3, v4
    v_lshlrev_b32 v5, 4, v5
    v_lshl_add_u32 v5, v2, {lg}, v5
    s_lshl_b32 s25, s23, 18
    v_add_u32 v5, s25, v5
    v_xor_b32 v6, 64, v5
    """)
    for n in range(4):
        go = [((4*lw+n) // PB) * 2048 + ((4*lw+n) % PB) * 8 * R * 2048 for lw in range(4)]
        lo = [(XB[(4*lw+n) // PB] + ((4*lw+n) % PB) * 8) * 128 for lw in range(4)]
        sel4(a, "s26", go)
        a(f"v_add_u32 v{20+n}, s26, v{5 + (n & 1)}")
        sel4(a, f"s{46+n}", lo)
    if shape == 32:
        a("v_and_b32 v7, 1, v4\nv_lshlrev_b32 v7, 2, v7")
    else:
        a("v_and_b32 v7, 1, v4\nv_lshlrev_b32 v7, 1, v7")
    a(f"""
    v_xor_b32 v7, v7, v3
    v_lshlrev_b32 v7, 4, v7
    v_lshl_add_u32 v7, v2, 11, v7
    s_lshl_b32 s26, s24, 7
    s_lshl_b32 s27, s20, 15
    s_add_u32 s26, s26, s27
    v_add_u32 v7, s26, v7
    v_xor_b32 v8, {0 if shape == 32 else 64}, v7
    v_add_u32 v8, 0x4000, v8
    s_and_b32 s26, s20, 1
    s_lshl_b32 s26, s26, 2
    v_add_u32 v10, s26, v0
    s_cmp_ge_u32 s20, 2
    s_cselect_b32 s26, 7, {(A >> 1) & 7}
    v_xor_b32 v10, s26, v10
    v_lshlrev_b32 v10, 4, v10
    s_add_u32 s27, s25, 0x40000
    s_sub_u32 s28, s25, 0x800
    s_cmp_eq_u32 s25, 0
    s_cselect_b32 s28, 0x80000000, s28
    s_cmp_ge_u32 s20, 2
    s_cselect_b32 s27, s28, s27
    v_add_u32 v10, s27, v10
    s_lshl_b32 s51, s20, 11
    s_add_u32 s51, s51, {WOFF}
    s_lshl_b32 s52, s20, 6
    s_add_u32 s52, s52, {A*128}
    s_lshl_b32 s26, s24, 7
    v_lshl_add_u32 v11, v0, 1, s26
    s_add_u32 s26, s23, s24
    s_and_b32 s26, s26, 3
    """)
    T = sched_tables(sched)
    packs = [sum(s << (4 * i) for i, s in enumerate(t)) for t in T]
    sel4(a, "s54", [p & 0xffffffff for p in packs], "s26")
    sel4(a, "s55", [p >> 32 for p in packs], "s26")
    if stamps == "L": a("s_memtime s[56:57]")
    a(f"""
    s_waitcnt lgkmcnt(0)
    {"s_memtime s[58:59]" if stamps == "L" else ""}
    s_mov_b32 s8, s4
    s_mov_b32 s9, s5
    s_mov_b32 s10, 0x400000
    s_mov_b32 s11, 0x20000
    s_mov_b32 s12, s6
    s_mov_b32 s13, s7
    s_mov_b32 s14, 0x600000
    s_mov_b32 s15, 0x20000
    s_mov_b32 s30, 0
    s_mov_b32 s33, 0
    global_load_ushort v12, v11, s[36:37]
    global_load_ushort v13, v11, s[38:39]
    global_load_ushort v14, v11, s[40:41]
    global_load_ushort v15, v11, s[42:43]
    L_issue:
    s_and_b32 s31, s54, 15
    s_lshl_b32 s32, s31, 17
    s_lshl_b32 s31, s31, 7
    s_lshr_b64 s[54:55], s[54:55], 4
    """)
    def dma(m0, voff, srd, soff, nt):
        a(f"s_add_u32 m0, s33, {m0}" if isinstance(m0, str) else f"s_add_u32 m0, m0, {m0}")
        if soff[1]:
            a(f"s_add_u32 s34, {soff[0]}, {soff[1]}")
            a(f"buffer_load_dwordx4 v{voff}, {srd}, s34 offen {nt} lds")
        else:
            a("s_nop 0")
            a(f"buffer_load_dwordx4 v{voff}, {srd}, {soff[0]} offen {nt} lds")
    X, W = "s[8:11]", "s[12:15]"
    for n in range(4): dma(f"s{46+n}", 20 + n, X, ("s31", 0), ntx)
    a("s_mov_b64 exec, 15")
    dma("s52", 10, X, ("s31", 0), ntx)
    a("s_mov_b64 exec, -1")
    dma("s51", 7, W, ("s32", 0), ntw)
    dma(1024, 8, W, ("s32", 0), ntw)
    dma(8192 - 1024, 7, W, ("s32", 0x200000), ntw)
    dma(1024, 8, W, ("s32", 0x200000), ntw)
    dma(8192 - 1024, 7, W, ("s32", 0x400000), ntw)
    dma(1024, 8, W, ("s32", 0x400000), ntw)
    a(f"""
    s_add_u32 s33, s33, {SLOT}
    s_cmp_ge_u32 s33, {SLOT*NS}
    s_cselect_b32 s33, 0, s33
    s_add_u32 s30, s30, 1
    {"s_cmp_lg_u32 s30, 1; s_cbranch_scc1 L_st1; s_memtime s[60:61]; L_st1:".replace("; ", chr(10)) if stamps == "L" else ""}
    s_cmp_lt_u32 s30, 3
    s_cbranch_scc1 L_issue
    s_cmp_gt_u32 s30, 3
    s_cbranch_scc1 L_lw
    {"s_memtime s[62:63]" if stamps == "L" else ""}
    s_waitcnt vmcnt(22)
    {"s_memtime s[64:65]" if stamps == "L" else ""}
    s_barrier
    {"s_memtime s[66:67]" if stamps == "L" else ""}
    L_lw:
    s_waitcnt vmcnt(11)
    s_barrier
    s_cmp_lt_u32 s30, 16
    s_cbranch_scc1 L_issue
    s_waitcnt vmcnt(0)
    s_barrier
    v_lshlrev_b32 v12, 16, v12
    v_lshlrev_b32 v13, 16, v13
    v_lshlrev_b32 v14, 16, v14
    v_lshlrev_b32 v15, 16, v15
    v_add_f32 v13, 0x3727c5ac, v13
    v_rsq_f32 v13, v13
    v_lshlrev_b32 v16, 2, v0
    v_add_u32 v16, {PARM}, v16
    v_mul_f32 v13, v13, v14
    v_fma_f32 v15, -v12, v13, v15
    ds_write_b32 v16, v13
    ds_write_b32 v16, v15 offset:256
    v_mov_b32 v250, v0
    s_waitcnt lgkmcnt(0)
    s_barrier
    s_branch L_epi
    """)
    NACC = R * NT * CR
    ACC = lambda j, u: (j * NT + u) * CR
    FR = (R + 2 + 3 * NT) * 4
    XF = lambda buf, j: NACC + buf * FR + (j + 1) * 4
    WF = lambda buf, k, u: NACC + buf * FR + (R + 2) * 4 + (k * NT + u) * 4
    A0 = NACC + 2 * FR
    AX = lambda cls, u: A0 + cls * NK + u
    AW = lambda u: A0 + 3 * NK + u
    ADDR = list(range(A0, A0 + 3 * NK + NT))
    assert ADDR[-1] < 250
    LANE = 250; PI = 251
    a("L_cons:")
    if ks == 4: a("s_mov_b32 s21, s20\ns_mov_b32 s22, 0\ns_mov_b32 s29, 0")
    if ks == 2: a("s_lshr_b32 s21, s20, 1\ns_and_b32 s22, s20, 1\ns_mov_b32 s29, 0")
    if ks == 1: a("s_mov_b32 s21, 0\ns_and_b32 s22, s20, 1\ns_lshr_b32 s29, s20, 1")
    a(f"v_mov_b32 v{LANE}, v0")
    if shape == 32:
        a(f"v_and_b32 v1, 31, v0\nv_lshrrev_b32 v2, 5, v0")
    else:
        a(f"""
        v_and_b32 v1, 15, v0
        v_add_u32 v3, 4, v1
        v_bfe_u32 v4, v3, 3, 1
        v_and_b32 v5, 7, v3
        v_xor_b32 v6, 4, v5
        v_cmp_eq_u32 vcc, 1, v4
        s_nop 1
        v_cndmask_b32 v5, v6, v5, vcc
        v_lshl_add_u32 v1, v5, 1, v4
        v_lshrrev_b32 v2, 4, v0
        """)
    a(f"s_mul_i32 s25, s29, {TM}\nv_add_u32 v1, s25, v1\nv_mov_b32 v{PI}, v1")
    a(f"s_mul_i32 s25, s21, {NK*KC}\nv_add_u32 v2, s25, v2")
    for cls, da in ((0, -1), (1, 0), (2, 1)):
        base = {0: XB[R-1], 1: 0, 2: XB[0]}[cls]
        a(f"""
        v_add_u32 v3, {da}, v1
        v_ashrrev_i32 v4, 1, v3
        v_and_b32 v4, 7, v4
        v_xor_b32 v4, v4, v2
        v_lshlrev_b32 v4, 4, v4
        v_add_u32 v3, {base}, v3
        v_lshl_add_u32 v{AX(cls,0)}, v3, 7, v4
        """)
        for u in range(1, NK): a(f"v_xor_b32 v{AX(cls,u)}, {u*KC*16}, v{AX(cls,0)}")
    if shape == 32:
        a(f"""
        v_lshrrev_b32 v2, 5, v0
        v_bfe_u32 v3, v0, 4, 1
        v_bfe_u32 v4, v0, 2, 2
        v_and_b32 v5, 1, v0
        v_bfe_u32 v6, v0, 1, 1
        v_lshlrev_b32 v5, 2, v5
        v_lshl_add_u32 v5, v3, 1, v5
        v_add_u32 v5, v5, v6
        v_lshlrev_b32 v5, 3, v5
        v_lshrrev_b32 v6, 1, v4
        v_xor_b32 v6, s22, v6
        v_lshl_add_u32 v5, v6, 6, v5
        """)
        ux = 64
    else:
        a(f"""
        v_lshrrev_b32 v2, 4, v0
        v_bfe_u32 v4, v0, 2, 2
        v_and_b32 v5, 3, v0
        v_lshlrev_b32 v5, 3, v5
        v_and_b32 v3, 1, v2
        v_xor_b32 v3, s22, v3
        v_lshrrev_b32 v6, 1, v4
        v_lshl_add_u32 v6, v3, 1, v6
        v_lshl_add_u32 v5, v6, 5, v5
        """)
        ux = 32
    a(f"""
    v_lshl_add_u32 v4, v2, 3, v4
    s_mul_i32 s25, s21, {NK*KC*8}
    v_add_u32 v4, s25, v4
    v_lshl_add_u32 v5, v4, 7, v5
    v_add_u32 v{AW(0)}, {WOFF}, v5
    """)
    if NT == 2: a(f"v_xor_b32 v5, {ux}, v5\nv_add_u32 v{AW(1)}, {WOFF}, v5")
    for r in range(NACC): a(f"v_mov_b32 v{r}, 0")
    a(f"s_mov_b32 s30, 0\ns_mov_b32 s33, 0\ns_mov_b32 s35, {SLOT}")
    def mf_order():
        if order == "k": return [(k, u, j) for k in range(3) for u in range(NT) for j in range(R)]
        if order == "x":
            return [(k, u, f - k + 1) for f in range(-1, R + 1) for k in range(3) for u in range(NT) if 0 <= f - k + 1 < R]
        if order == "j": return [(k, u, j) for j in range(R) for u in range(NT) for k in range(3)]
    def reads(buf, st):
        def xr(j):
            cls = 0 if j == -1 else (2 if j == R else 1)
            off = XB[j] * 128 if cls == 1 else 0
            r = XF(buf, j)
            return [f"ds_read_b128 v[{r}:{r+3}], v{AX(cls,st)} offset:{off}"]
        def wr(k, u):
            r = WF(buf, k, u)
            return [f"ds_read_b64_tr_b16 v[{r+2*e}:{r+2*e+1}], v{AW(u)} offset:{k*8192 + st*KC*1024 + e*512}" for e in range(2)]
        L = []; seen = set()
        for (k, u, j) in mf_order():
            if ("w", k, u) not in seen: seen.add(("w", k, u)); L += wr(k, u)
            if ("x", j + k - 1) not in seen: seen.add(("x", j + k - 1)); L += xr(j + k - 1)
        return [] if noread else L
    op = "v_mfma_f32_32x32x16_bf16" if shape == 32 else "v_mfma_f32_16x16x32_bf16"
    def mfmas(buf):
        L = []
        for (k, u, j) in mf_order():
            c = ACC(j, u); w_ = WF(buf, k, u); x_ = XF(buf, j + k - 1)
            L.append(f"{op} v[{c}:{c+CR-1}], v[{w_}:{w_+3}], v[{x_}:{x_+3}], v[{c}:{c+CR-1}]")
        return ["s_nop 0"] * len(L) if nomfma else L
    upd = [f"s_add_u32 s33, s33, 1", "s_cmp_eq_u32 s33, 3", f"s_cselect_b32 s34, {(-2*SLOT) & 0xffffffff}, s35", "s_cselect_b32 s33, 0, s33"] + [f"v_add_u32 v{r}, s34, v{r}" for r in ADDR]
    per = rper or (2 if shape == 32 else 1)
    def step(M, fill, barrier):
        fill = list(fill)
        for n, m in enumerate(M):
            a(m)
            if n == 0 and barrier: a("s_barrier")
            for _ in range(per):
                if fill: a(fill.pop(0))
        for f in fill: a(f)
    a("s_barrier")
    if stamps: a("s_memtime s[80:81]\ns_memrealtime s[64:65]")
    if probe: a("s_memrealtime s[72:73]")
    for r in reads(0, 0): a(r)
    if NK == 1:
        for f in upd: a(f)
    U = max(2, NK)
    a("L_cloop:")
    for n in range(U):
        nxt = (n + 1) % NK
        last = (n == U - 1)
        fill = reads((n + 1) & 1, nxt)
        if nxt == NK - 1: fill += upd
        if n == U - 2: fill += ["s_add_u32 s30, s30, 1", f"s_cmp_eq_u32 s30, {16*NK//U}"]
        a("s_waitcnt lgkmcnt(0)")
        if last: a("s_cbranch_scc1 L_tail")
        step(mfmas(n & 1), fill, nxt == 0)
    a("s_branch L_cloop")
    a("L_tail:")
    for m in mfmas(1): a(m)
    if stamps: a("s_memtime s[82:83]\ns_memrealtime s[66:67]")
    if probe: a("s_memrealtime s[74:75]")
    a("s_barrier")
    E = 240
    for j in range(R):
        a(f"""
        v_mov_b32 v{E}, {j}
        v_mad_u32_u24 v{E}, v{PI}, {R}, v{E}
        v_bfe_u32 v{E+1}, v{E}, 2, 3
        v_lshrrev_b32 v{E+2}, {5 if shape == 32 else 4}, v{LANE}
        v_lshlrev_b32 v{E+2}, {2 if shape == 32 else 0}, v{E+2}
        s_lshl_b32 s25, s22, 3
        v_add_u32 v{E+2}, s25, v{E+2}
        v_xor_b32 v{E+1}, v{E+1}, v{E+2}
        v_lshlrev_b32 v{E+1}, 4, v{E+1}
        v_lshl_add_u32 v{E}, v{E}, 8, v{E+1}
        s_lshl_b32 s25, s21, 15
        v_add_u32 v{E}, s25, v{E}
        """)
        for u in range(NT):
            for q in range(CR // 4):
                x = (8 * u + q) if shape == 32 else 4 * u
                c = ACC(j, u) + 4 * q
                a(f"v_xor_b32 v{E+3}, {x*16}, v{E}\nds_write_b128 v{E+3}, v[{c}:{c+3}]")
    a("L_epi:")
    a(f"""
    s_mov_b32 s8, s44
    s_mov_b32 s9, s45
    s_mov_b32 s10, 0x400000
    s_mov_b32 s11, 0x20000
    v_lshrrev_b32 v1, 3, v{LANE}
    v_and_b32 v2, 7, v{LANE}
    s_and_b32 s25, s19, 3
    s_lshr_b32 s26, s19, 2
    s_lshl_b32 s26, s26, 6
    s_add_u32 s25, s25, s26
    v_lshl_add_u32 v3, v1, 2, s25
    v_lshlrev_b32 v4, 1, v2
    v_xor_b32 v4, v4, v1
    v_lshlrev_b32 v4, 4, v4
    v_lshl_add_u32 v4, v3, 8, v4
    v_xor_b32 v5, 16, v4
    v_add_u32 v6, 0x10000, v4
    v_add_u32 v7, 0x10000, v5
    v_lshlrev_b32 v8, 5, v2
    v_add_u32 v8, {PARM}, v8
    v_lshlrev_b32 v9, 11, v3
    v_lshl_add_u32 v9, v2, 4, v9
    s_lshl_b32 s25, s23, 18
    s_lshl_b32 s26, s24, 7
    s_add_u32 s25, s25, s26
    v_add_u32 v9, s25, v9
    s_mov_b32 s26, 0xbfb8aa3b
    s_mov_b32 s27, 0xbfb8aa3b
    s_mov_b32 s28, 0x10000
    s_waitcnt lgkmcnt(0)
    s_barrier
    """)
    a("ds_read_b128 v[12:15], v8\nds_read_b128 v[16:19], v8 offset:16\nds_read_b128 v[20:23], v8 offset:256\nds_read_b128 v[24:27], v8 offset:272")
    P = lambda rr, pl: 32 + (rr * 4 + pl) * 8
    for rr in range(2):
        for pl in range(ks):
            for e in range(2):
                a(f"ds_read_b128 v[{P(rr,pl)+4*e}:{P(rr,pl)+4*e+3}], v{4 + e + 2*(pl >> 1)} offset:{rr*8192 + (pl & 1)*32768}")
    a("s_waitcnt lgkmcnt(0)")
    for rr in range(2):
        y = P(rr, 0); z = 100
        for pl in range(1, ks):
            for n in range(4): a(f"v_pk_add_f32 v[{y+2*n}:{y+2*n+1}], v[{y+2*n}:{y+2*n+1}], v[{P(rr,pl)+2*n}:{P(rr,pl)+2*n+1}]")
        for n in range(4): a(f"v_pk_fma_f32 v[{y+2*n}:{y+2*n+1}], v[{y+2*n}:{y+2*n+1}], v[{12+2*n}:{13+2*n}], v[{20+2*n}:{21+2*n}]")
        for n in range(4): a(f"v_pk_mul_f32 v[{z+2*n}:{z+2*n+1}], v[{y+2*n}:{y+2*n+1}], s[26:27]")
        for n in range(8): a(f"v_exp_f32 v{z+n}, v{z+n}")
        for n in range(4): a(f"v_pk_add_f32 v[{z+2*n}:{z+2*n+1}], v[{z+2*n}:{z+2*n+1}], 1.0 op_sel_hi:[1,0]")
        for n in range(8): a(f"v_rcp_f32 v{z+n}, v{z+n}")
        for n in range(4): a(f"v_pk_mul_f32 v[{y+2*n}:{y+2*n+1}], v[{y+2*n}:{y+2*n+1}], v[{z+2*n}:{z+2*n+1}]")
        o = 112 + 4 * rr
        for n in range(4): a(f"v_cvt_pk_bf16_f32 v{o+n}, v{y+2*n}, v{y+2*n+1}")
        a(f"buffer_store_dwordx4 v[{o}:{o+3}], v9, s[8:11], {'0' if rr == 0 else 's28'} offen {nto}")
    if stamps == "L":
        a("s_waitcnt vmcnt(0)\ns_cmp_lg_u32 s19, 4\ns_cbranch_scc1 L_end\ns_waitcnt lgkmcnt(0)")
        for r in (56, 58, 60, 62, 64, 66): a(f"s_sub_u32 s{r}, s{r}, s92")
        stamp_end(a, extra=["s56", "s58", "s60", "s62", "s64", "s66"], vbase=120)
    elif stamps:
        a("s_memtime s[84:85]\ns_waitcnt vmcnt(0)\ns_cmp_lg_u32 s19, 0\ns_cbranch_scc1 L_end\ns_waitcnt lgkmcnt(0)")
        a("s_sub_u32 s80, s80, s92\ns_sub_u32 s82, s82, s92\ns_sub_u32 s84, s84, s92\ns_sub_u32 s66, s66, s64\ns_sub_u32 s64, s64, s90")
        stamp_end(a, extra=["s80", "s82", "s84", "s64", "s66"], vbase=120)
    if probe:
        lo, hi = {"all": ("s70", "s76"), "pro": ("s70", "s72"), "main": ("s72", "s74"), "epi": ("s74", "s76")}[probe]
        a(f"""
        s_cmp_ge_u32 s19, 4
        s_cbranch_scc1 L_end
        s_waitcnt vmcnt(0)
        s_memrealtime s[76:77]
        s_waitcnt lgkmcnt(0)
        s_sub_u32 s78, {hi}, {lo}
        s_lshl_b32 s78, s78, 1
        s_min_u32 s78, s78, 20000
        L_probe:
        s_memrealtime s[60:61]
        s_waitcnt lgkmcnt(0)
        s_sub_u32 s62, s60, s76
        s_cmp_lt_u32 s62, s78
        s_cbranch_scc1 L_probe
        """)
    a("L_end:\ns_endpgm")
    ref = "standalone__batchnorm__prompt.s.ref"
    hdr = open(ref).read().split("; Override")[0] if os.path.exists(ref) else ""
    return wrap(a.text(), 256, 512, LDS, vgpr=256, accum=256, header=hdr)

if __name__ == "__main__":
    import ast
    names = []
    for spec in sys.argv[1:]:
        name, _, kw = spec.partition(":")
        d = {}
        for item in filter(None, kw.split(",")):
            k, v = item.split("=")
            try: v = ast.literal_eval(v)
            except Exception: v = v.replace("+", " ")
            d[k] = v
        open(name + ".s", "w").write(gen(**d))
        names.append(name + ".s")
    print(" ".join(names))
```

```python
import sys, os
from asmlib import *
from gen2 import sched_tables, sel4

SLOT = 41216
WOFF = 130 * 128
NS = 3
PLANE = SLOT
PARM = NS * SLOT
PLANE1 = PARM + 512
LDS = PLANE1 + 32768

def gen(stamps=False, sched="s2", nto="sc0 sc1", probe=None, k0=5, k=7, whalf=1, xfirst=0, split=1, prio=1, hops=1, mmap=0, lag=2, e2pos=2, bpos=29, gsw=1, snake=1, lprio=3, sd=1, n1=10, LAM=7, bl=19, tlb=0, e2at=44, il=1, cpf=1, walk=0, pearly=1):
    a = Asm()
    L = stamps == "L"
    if probe: a('s_memrealtime s[70:71]')
    if stamps: stamp_begin(a); a("s_load_dwordx2 s[88:89], s[0:1], 64")
    a("""
    s_load_dwordx2 s[4:5], s[0:1], 0
    s_load_dwordx2 s[8:9], s[0:1], 8
    s_load_dwordx8 s[36:43], s[0:1], 16
    s_load_dwordx2 s[12:13], s[0:1], 48
    v_readfirstlane_b32 s19, v0
    s_cmpk_ge_u32 s2, 0x100
    s_cbranch_scc1 L_end
    """)
    if mmap == 0:
        a("s_bfe_u32 s21, s2, 0x30003\ns_and_b32 s22, s2, 4\ns_lshl1_add_u32 s23, s22, s21")
    else:
        a("s_bfe_u32 s23, s2, 0x40002\ns_lshr_b32 s21, s23, 1")
    a("""
    s_and_b32 s22, s2, 3
    s_lshr_b32 s25, s2, 6
    s_lshl2_add_u32 s24, s22, s25
    s_lshl_b32 s23, s23, 18
    s_lshl_b32 s24, s24, 7
    s_cmpk_ge_u32 s19, 0x100
    """)
    if cpf:
        a(f"""
        s_cbranch_scc0 L_load
        s_getpc_b64 s[16:17]
        L_pc:
        s_lshl_b32 s26, s2, 5
        s_and_b32 s26, s26, 0xf00
        s_add_u32 s26, s26, s19
        s_lshl_b32 s26, s26, 1
        s_min_u32 s26, s26, L_last-L_pc-128
        s_add_u32 s27, s26, 64
        s_load_dword s44, s[16:17], s26
        s_load_dword s44, s[16:17], s27
        s_branch L_cons
        L_load:
        """)
    else:
        a("s_cbranch_scc1 L_cons")
    T = sched_tables(sched)
    a(f"""
    v_bfe_u32 v2, v0, 3, 3
    v_and_b32 v3, 7, v0
    v_bfe_u32 v4, v0, 4, 2
    v_xor_b32 v5, v3, v4
    s_lshl_b32 s50, s19, 6
    s_add_u32 s26, s50, s23
    v_lshl_add_u32 v5, v5, 4, s26
    v_lshl_add_u32 v5, v2, 14, v5
    v_xor_b32 v6, 64, v5
    v_add_u32 v6, {131072-1024}, v6
    v_and_b32 v4, 2, v2
    v_xor_b32 v7, v4, v3
    s_lshl_b32 s26, s19, 9
    s_add_u32 s26, s26, s24
    v_lshl_add_u32 v7, v7, 4, s26
    v_lshl_add_u32 v7, v2, 11, v7
    s_mul_i32 s51, s19, 96
    s_addk_i32 s51, {WOFF}
    """)
    if whalf:
        a(f"""
        s_bitcmp1_b32 s2, 5
        s_cselect_b32 s26, 0x4040, 0
        s_cselect_b32 s27, 3072, 0
        v_xor_b32 v7, s26, v7
        s_sub_u32 s52, s51, s27
        s_add_u32 s51, s51, s27
        s_addk_i32 s52, 3072
        """)
    else:
        a("s_add_u32 s52, s51, 3072")
    a(f"""
    v_xor_b32 v8, 0x4040, v7
    v_mul_u32_u24 v9, 7, v2
    v_xor_b32 v9, v9, v3
    s_add_u32 s26, s23, 0x40000
    v_lshl_add_u32 v9, v9, 4, s26
    s_mov_b32 s26, {(-0x40800) & 0xffffffff}
    v_mad_i32_i24 v9, v2, s26, v9
    s_add_u32 s29, s21, s25
    s_and_b32 s29, s29, 3
    """)
    if sched == "none": a("s_mov_b32 s54, 0")
    elif sched == "rot": a("s_lshl_b32 s54, s29, 2")
    else: a("s_mov_b32 s54, s29")
    a(f"""
    s_mov_b32 s6, 0x400000
    s_mov_b32 s7, 0x20000
    s_mov_b32 s10, 0x600000
    s_mov_b32 s11, 0x20000
    s_cmp_eq_u32 s19, 0
    s_cselect_b64 vcc, -1, 0
    s_mov_b32 s30, 0
    s_mov_b32 s33, 0
    {"s_memtime s[56:57]" if L else ""}
    s_waitcnt lgkmcnt(0)
    {"s_memtime s[58:59]" if L else ""}
    L_adv:
    s_and_b32 s31, s54, 15
    s_lshl_b32 s32, s31, 17
    s_lshl_b32 s31, s31, 7
    """)
    X, W = "s[4:7]", "s[8:11]"
    xp = [("s50", f"buffer_load_dwordx4 v{5 + (n & 1)}, {X}, s31 offen offset:{n*1024} lds") for n in range(4)]
    wa = [("s51", f"buffer_load_dwordx4 v7, {W}, s{[32,34,35][t]} offen offset:{t*1024} lds") for t in range(3)]
    wb = [("s52", f"buffer_load_dwordx4 v8, {W}, s{[32,34,35][t]} offen offset:{t*1024} lds") for t in range(3)]
    pieces = (xp + wa + wb) if xfirst else (wa + xp + wb)
    hpos = 1
    def bar(n, cond):
        a(f"""
        {cond}
        s_cbranch_scc0 L_nb{n}
        s_waitcnt vmcnt({n+1})
        s_cbranch_vccnz L_b{n}
        s_waitcnt vmcnt({n})
        L_b{n}:
        {"s_cmp_lg_u32 s30, 1; s_cbranch_scc1 L_st1; s_memtime s[62:63]; L_st1:".replace("; ", chr(10)) if L and n == k0 else ""}
        s_barrier
        L_nb{n}:
        """)
    cur = None
    extra = [f"s_add_u32 s34, s32, {0x200000-1024}", f"s_add_u32 s35, s32, {0x400000-2048}", "s_lshr_b64 s[54:55], s[54:55], 4"]
    for n in range(11):
        if n == k0 and k0 == k: bar(n, "s_cmp_ge_u32 s30, 1")
        elif n == k0: bar(n, "s_cmp_eq_u32 s30, 1")
        elif n == k: bar(n, "s_cmp_ge_u32 s30, 2")
        if n == 10: break
        if n == hpos:
            a(f"""
            s_cbranch_vccz L_nh
            s_add_u32 m0, s33, 16384
            s_mov_b64 exec, 0xffff
            buffer_load_dwordx4 v9, {X}, s31 offen lds
            s_mov_b64 exec, -1
            L_nh:
            """)
            cur = None
        m, ins = pieces[n]
        if m != cur:
            a(f"s_add_u32 m0, s33, {m}")
            a(extra.pop(0) if extra else "s_nop 0")
            cur = m
        if n == 1:
            while len(extra) > 1: a(extra.pop(0))
        a(ins)
    for e in extra: a(e)
    a(f"""
    s_add_u32 s33, s33, {SLOT}
    s_cmp_ge_u32 s33, {SLOT*NS}
    s_cselect_b32 s33, 0, s33
    s_add_u32 s30, s30, 1
    s_cmp_lg_u32 s30, 1
    s_cbranch_scc1 L_nt
    {"s_memtime s[60:61]" if L else ""}
    """)
    packs = [sum(s << (4 * i) for i, s in enumerate(t[1:])) for t in T]
    sel4(a, "s54", [p & 0xffffffff for p in packs], "s29")
    sel4(a, "s55", [p >> 32 for p in packs], "s29")
    if gsw:
        a("""
        s_lshr_b32 s26, s2, 2
        s_xor_b32 s26, s26, s2
        s_bitcmp1_b32 s26, 0
        s_cselect_b32 s27, 0x44444444, 0
        """)
        for r in ("s54", "s55"):
            a(f"s_lshr_b32 s26, {r}, 1\ns_xor_b32 s26, s26, {r}\ns_and_b32 s26, s26, s27\ns_mul_i32 s26, s26, 3\ns_xor_b32 {r}, {r}, s26")
    a(f"""
    L_nt:
    s_cmp_lt_u32 s30, 16
    s_cbranch_scc1 L_adv
    v_and_b32 v16, 63, v0
    v_lshl_add_u32 v11, v16, 1, s24
    s_waitcnt lgkmcnt(0)
    global_load_ushort v12, v11, s[36:37]
    global_load_ushort v13, v11, s[38:39]
    global_load_ushort v14, v11, s[40:41]
    global_load_ushort v15, v11, s[42:43]
    {"v_mov_b32 v17, s23" if tlb == 1 else ""}
    {"v_lshl_add_u32 v17, v16, 12, s23" if tlb == 2 else ""}
    {"global_load_ushort v18, v17, s[12:13]" if tlb else ""}
    s_waitcnt vmcnt({5 if tlb else 4})
    s_barrier
    """)
    ER, PA, O0, ER1, AL = 200, 202, 203, 205, 207
    def epi_addr():
        a(f"""
        v_bfe_u32 v1, v0, 3, 3
        v_and_b32 v2, 7, v0
        v_lshlrev_b32 v3, 1, v2
        v_xor_b32 v3, v3, v1
        s_lshl_b32 s26, s19, 6
        s_add_u32 s26, s26, {PLANE}
        v_lshl_add_u32 v3, v3, 4, s26
        v_lshl_add_u32 v{ER}, v1, 8, v3
        v_xor_b32 v{ER+1}, 16, v{ER}
        v_add_u32 v{ER1}, {PLANE1-PLANE}, v{ER}
        v_add_u32 v{ER1+1}, {PLANE1-PLANE}, v{ER+1}
        v_lshlrev_b32 v3, 5, v2
        v_add_u32 v{PA}, {PARM}, v3
        v_and_b32 v3, 3, v1
        v_lshrrev_b32 v1, 2, v1
        v_lshl_add_u32 v1, v3, 1, v1
        s_lshl_b32 s26, s19, 5
        s_add_u32 s26, s26, s23
        s_add_u32 s26, s26, s24
        v_lshl_add_u32 v3, v2, 4, s26
        v_lshl_add_u32 v{O0}, v1, 14, v3
        v_xor_b32 v{O0+1}, 0x4000, v{O0}
        s_mov_b32 s14, 0x400000
        s_mov_b32 s15, 0x20000
        s_mov_b32 s26, 0xbfb8aa3b
        s_mov_b32 s28, 0x20000
        s_movk_i32 s27, 0x2000
        s_mov_b32 s29, 0x22000
        """)
    epi_addr()
    a(f"""
    v_lshlrev_b32 v16, 2, v16
    v_add_u32 v16, {PARM}, v16
    s_waitcnt vmcnt({1 if tlb else 0})
    v_lshlrev_b32 v13, 16, v13
    v_add_f32 v13, 0x3727c5ac, v13
    v_rsq_f32 v13, v13
    v_lshlrev_b32 v12, 16, v12
    v_lshlrev_b32 v14, 16, v14
    v_lshlrev_b32 v15, 16, v15
    v_mul_f32 v13, v13, v14
    v_fma_f32 v15, -v12, v13, v15
    v_mul_f32 v13, s26, v13
    v_mul_f32 v15, s26, v15
    {f"s_setprio {lprio}" if lprio else ""}
    ds_write_b32 v16, v13
    ds_write_b32 v16, v15 offset:256
    """)
    ES = stamps in ("E0", "E4")
    PS, PT = 64, 72
    prd = f"ds_read_b128 v[{PS}:{PS+3}], v{PA}\nds_read_b128 v[{PT}:{PT+3}], v{PA} offset:256\nds_read_b128 v[{PS+4}:{PS+7}], v{PA} offset:16\nds_read_b128 v[{PT+4}:{PT+7}], v{PA} offset:272"
    a("L_epi:")
    if pearly: a(prd)
    if walk: a("s_cmp_eq_u32 s28, s28\ns_branch L_wk0\nL_wkb:\ns_cmp_lg_u32 s28, s28")
    a("s_waitcnt lgkmcnt(0)\ns_barrier")
    PS, PT = 64, 72
    P = lambda rr, pl: 80 + (rr * 2 + pl) * 8
    def rd(rr):
        return [f"ds_read_b128 v[{P(rr,pl)+4*e}:{P(rr,pl)+4*e+3}], v{(ER1 if pl else ER)+e} offset:{(rr & 1)*2048 + (rr >> 1)*16384}" for pl in range(2) for e in range(2)]
    for t in rd(0): a(t)
    if not pearly: a(prd)
    for t in rd(1): a(t)
    if lprio == 3: a("s_setprio 0")
    a("s_waitcnt lgkmcnt(0)")
    def row(rr):
        y = P(rr, 0); p = P(rr, 1); z = 144 + 8 * (rr & 1); o = 160 + 4 * rr
        A = [f"v_pk_add_f32 v[{y+2*n}:{y+2*n+1}], v[{y+2*n}:{y+2*n+1}], v[{p+2*n}:{p+2*n+1}]" for n in range(4)]
        B = [f"v_pk_fma_f32 v[{y+2*n}:{y+2*n+1}], v[{y+2*n}:{y+2*n+1}], v[{PS+2*n}:{PS+2*n+1}], v[{PT+2*n}:{PT+2*n+1}]" for n in range(4)]
        E = [f"v_exp_f32 v{z+n}, v{y+n}" for n in range(8)]
        C = [f"v_pk_fma_f32 v[{z+2*n}:{z+2*n+1}], v[{z+2*n}:{z+2*n+1}], s[26:27], s[26:27] op_sel_hi:[1,0,0]" for n in range(4)]
        Rr = [f"v_rcp_f32 v{z+n}, v{z+n}" for n in range(8)]
        M = [f"v_pk_mul_f32 v[{y+2*n}:{y+2*n+1}], v[{y+2*n}:{y+2*n+1}], v[{z+2*n}:{z+2*n+1}]" for n in range(4)]
        V = [f"v_cvt_pk_bf16_f32 v{o+n}, v{y+2*n}, v{y+2*n+1}" for n in range(4)]
        S = [f"buffer_store_dwordx4 v[{o}:{o+3}], v{O0+(rr & 1)}, s[12:15], {['0', 's28', 's27', 's29'][rr]} offen {nto}"]
        if il: return [A[0], A[1], B[0], A[2], B[1], E[0], A[3], E[1], B[2], E[2], B[3], E[3], C[0], E[4], E[5], C[1], E[6], E[7], C[2], Rr[0], Rr[1], C[3], Rr[2], Rr[3], M[0], Rr[4], Rr[5], M[1], Rr[6], V[0], Rr[7], M[2], V[1], M[3], V[2], V[3]] + S
        return A + B + E + C + Rr + M + V + S
    first = row(0) + row(1)
    late = ["s_barrier"] + rd(2) + rd(3)
    for n, t in enumerate(first):
        a(t)
        if n >= e2at and late and ("v_exp" in t or "v_rcp" in t): a(late.pop(0))
        if walk and n == 42: a("L_wk0:\ns_cbranch_scc1 L_wk1")
        if ES and n == 36: a("s_memtime s[60:61]")
        if n == 67 and not ES:
            assert not late
            a("s_waitcnt lgkmcnt(4)")
        if ES and n == 72: a("s_memtime s[56:57]")
        if ES and n == e2at - 1: a("s_memtime s[82:83]")
        if ES and n == e2at + 1: a("s_memtime s[58:59]")
    for t in late: a(t)
    if ES: a("s_waitcnt lgkmcnt(0)")
    if ES: a("s_memtime s[62:63]")
    for n, t in enumerate(row(2)):
        a(t)
        if walk and n == 5: a("L_wk1:\ns_cbranch_scc1 L_wk2")
        if n == 7 and not ES: a("s_waitcnt lgkmcnt(0)")
    for n, t in enumerate(row(3)):
        a(t)
        if walk and n == 5: a("L_wk2:\ns_cbranch_scc1 L_wkb")
    if ES: a("s_memtime s[68:69]")
    a("s_branch L_fin" if (stamps or probe) else "L_end:\ns_endpgm")
    R, NT, CR = 8, 2, 4
    ACC = lambda j, u: (j * NT + u) * CR
    FR = 64
    XF = lambda buf, j: 64 + buf * FR + (j + 1) * 4
    WF = lambda buf, kk, u: 64 + buf * FR + 40 + (kk * NT + u) * 4
    AX = lambda cls: 192 + cls
    AW = lambda u: 195 + u
    EW = lambda u: 197 + u
    ADDR = list(range(192, 197))
    a("L_cons:")
    a("s_waitcnt lgkmcnt(0)\ns_add_u32 s27, s24, 64")
    for r in (36, 38, 40, 42):
        a(f"s_load_dword s44, s[{r}:{r+1}], s24\ns_load_dword s44, s[{r}:{r+1}], s27")

    if prio: a(f"s_setprio {prio}")
    a(f"""
    v_and_b32 v10, 15, v0
    v_bfe_u32 v11, v0, 4, 2
    v_lshrrev_b32 v1, 2, v10
    v_lshrrev_b32 v2, 3, v10
    v_xor_b32 v1, v1, v2
    v_and_b32 v1, 1, v1
    v_and_b32 v2, 3, v10
    v_lshl_add_u32 v1, v2, 1, v1
    v_and_or_b32 v1, v10, 8, v1
    v_bfe_u32 v12, v0, 7, 1
    v_bfe_u32 v13, v0, 6, 1
    v_lshl_add_u32 v2, v12, 2, v11
    v_lshrrev_b32 v4, 1, v1
    v_xor_b32 v4, v4, v2
    v_lshlrev_b32 v4, 4, v4
    v_lshl_add_u32 v{AX(1)}, v1, 7, v4
    v_add_u32 v3, -1, v1
    v_bfe_u32 v4, v3, 1, 3
    v_xor_b32 v4, v4, v2
    v_lshlrev_b32 v4, 4, v4
    v_ashrrev_i32 v5, 31, v3
    v_and_b32 v5, 18, v5
    v_add_u32 v3, 0x70, v3
    v_add_u32 v3, v3, v5
    v_lshl_add_u32 v{AX(0)}, v3, 7, v4
    v_add_u32 v3, 1, v1
    v_bfe_u32 v4, v3, 1, 3
    v_xor_b32 v4, v4, v2
    v_lshlrev_b32 v4, 4, v4
    v_and_b32 v5, 16, v3
    v_and_b32 v3, 15, v3
    v_lshl_add_u32 v3, v5, 3, v3
    v_lshl_add_u32 v{AX(2)}, v3, 7, v4
    v_mul_u32_u24 v2, 3072, v2
    v_bfe_u32 v4, v0, 2, 2
    v_lshl_add_u32 v2, v4, 7, v2
    v_and_b32 v5, 3, v0
    v_lshl_add_u32 v2, v5, 3, v2
    v_and_b32 v3, 1, v11
    v_xor_b32 v3, v3, v13
    v_lshrrev_b32 v4, 1, v4
    v_lshl_add_u32 v3, v3, 1, v4
    v_lshl_add_u32 v2, v3, 5, v2
    v_add_u32 v{AW(0)}, {WOFF}, v2
    v_xor_b32 v{AW(1)}, 32, v{AW(0)}
    v_lshl_add_u32 v2, v13, 3, v11
    v_and_b32 v3, 7, v10
    v_xor_b32 v2, v2, v3
    v_lshlrev_b32 v2, 4, v2
    v_lshl_add_u32 v2, v10, 8, v2
    v_mul_u32_u24 v3, {PLANE1-PLANE}, v12
    v_add_u32 v2, v2, v3
    v_add_u32 v{EW(0)}, {PLANE}, v2
    v_xor_b32 v{EW(1)}, 64, v{EW(0)}
    """)
    for n, r in enumerate(ADDR): a(f"v_mov_b32 v{AL+n}, v{r}")
    for r in range(0, 64, 2): a(f"v_mov_b64 v[{r}:{r+1}], 0")
    a(f"s_mov_b32 s30, 0\ns_mov_b32 s33, 0\ns_mov_b32 s35, {SLOT}\ns_waitcnt lgkmcnt(0)")
    tiles = [(j, 0) for j in range(4)] + [(j, 1) for j in range(4)] + [(j, 1) for j in range(4, 8)] + [(j, 0) for j in range(4, 8)]
    order = []
    for n, (j, u) in enumerate(tiles):
        taps = (2, 1, 0) if (snake and n & 1) else (0, 1, 2)
        order += [(kk, u, j) for kk in taps]
    def reads(buf):
        def xr(j):
            cls = 0 if j == -1 else (2 if j == R else 1)
            off = j * 2048 if cls == 1 else 0
            r = XF(buf, j)
            return [f"ds_read_b128 v[{r}:{r+3}], v{AX(cls)} offset:{off}"]
        def wr(kk, u):
            r = WF(buf, kk, u)
            return [f"ds_read_b64_tr_b16 v[{r+2*e}:{r+2*e+1}], v{AW(u)} offset:{kk*1024 + e*512}" for e in range(2)]
        Lr = []; seen = set()
        for n, (kk, u, j) in enumerate(order):
            if ("w", kk, u) not in seen: seen.add(("w", kk, u)); Lr += [(t, n) for t in wr(kk, u)]
            if ("x", j + kk - 1) not in seen: seen.add(("x", j + kk - 1)); Lr += [(t, n) for t in xr(j + kk - 1)]
        return Lr
    def mfmas(buf):
        return [f"v_mfma_f32_16x16x32_bf16 v[{ACC(j,u)}:{ACC(j,u)+3}], v[{WF(buf,kk,u)}:{WF(buf,kk,u)+3}], v[{XF(buf,j+kk-1)}:{XF(buf,j+kk-1)+3}], v[{ACC(j,u)}:{ACC(j,u)+3}]" for (kk, u, j) in order]
    upd = [f"s_add_u32 s33, s33, 1", "s_cmp_eq_u32 s33, 3", f"s_cselect_b32 s34, {(-2*SLOT) & 0xffffffff}, s35", "s_cselect_b32 s33, 0, s33"] + [f"v_add_u32 v{r}, s34, v{r}" for r in ADDR]
    NE = min(22, 45 - bpos)
    WAITS = [-2, 2 if snake else 4, 10, 23]
    need = [n for _, n in reads(0)]
    def covered(wi):
        if wi == len(WAITS) - 1: return 22
        return sum(1 for n in need if n <= WAITS[wi + 1])
    def wr_tile(t):
        j, u = tiles[t]
        return f"ds_write_b128 v{EW(u)}, v[{ACC(j,u)}:{ACC(j,u)+3}] offset:{j*4096}"
    def step(buf, kind):
        late = [t for t, _ in reads(buf)[NE:]]
        early = [t for t, _ in reads(buf ^ 1)[:NE]]
        misc = list(upd) + (["s_add_u32 s30, s30, 1", "s_cmp_lt_u32 s30, 7"] if kind == 1 else [])
        ops = list(range(NE))
        nr = NE
        for g, m in enumerate(mfmas(buf)):
            a(m)
            if kind == "tail" and g % 3 == 2 and g // 3 >= lag:
                a(wr_tile(g // 3 - lag)); ops.append("w")
            elif g in WAITS or (kind == "tail" and g + 1 in WAITS and (g + 1) % 3 == 2 and (g + 1) // 3 >= lag):
                wi = WAITS.index(g) if g in WAITS else WAITS.index(g + 1)
                c = covered(wi)
                assert nr >= c, (g, nr, c)
                a(f"s_waitcnt lgkmcnt({len(ops) - 1 - ops.index(c - 1)})")
            elif late:
                a(late.pop(0)); ops.append(nr); nr += 1
            elif kind == "tail":
                if split and g == 3 * (8 + lag + sd): a(f"s_waitcnt lgkmcnt({sd})")
                if split and g == 3 * (8 + lag + sd) + 1: a("s_barrier")
            elif g < bpos:
                if misc: a(misc.pop(0))
            elif g == bpos:
                assert not misc and g > WAITS[-1]
                a("s_barrier")
            elif early: a(early.pop(0))
            elif g == 46: a(f"s_waitcnt lgkmcnt({NE - covered(0)})")
            elif g == 47 and kind == 1: a("s_cbranch_scc1 L_cloop")
    a("s_barrier")
    if stamps: a("s_memtime s[80:81]\ns_memrealtime s[64:65]\ns_waitcnt lgkmcnt(0)")
    if probe: a("s_memrealtime s[72:73]\ns_waitcnt lgkmcnt(0)")
    for t, _ in reads(0)[:NE]: a(t)
    a(f"s_waitcnt lgkmcnt({NE - covered(0)})")
    a("L_cloop:")
    step(0, 0)
    step(1, 1)
    seq = [(0, t) for t in range(n1)] + [(1, t) for t in range(8)]
    for t in range(8, 16): seq += ([(0, t)] if t >= n1 else []) + [(1, t)]
    MF = [mfmas(0), mfmas(1)]
    fm = []
    for b, t in seq: fm += [(MF[b][3*t+g], b, 3*t+g) for g in range(3)]
    def operands(b, idx):
        kk, u, j = order[idx]
        return {XF(b, j + kk - 1), WF(b, kk, u), WF(b, kk, u) + 2}
    dst = lambda text: int(text.split("v[")[1].split(":")[0])
    first_use = {}
    for g, (_, b, idx) in enumerate(fm):
        for r in operands(b, idx): first_use.setdefault(r, g)
    r15 = [t for t, _ in reads(1)]
    for n, r in enumerate(ADDR): r15 = [t.replace(f", v{r} ", f", v{AL+n} ") for t in r15]
    pend = [(first_use[dst(t)], 0, t) for t, _ in reads(0)[NE:]] + [(first_use[dst(t)], 1, t) for t in r15]
    pend.sort(key=lambda e: e[0])
    ops = [(dst(t), -2 - NE + n) for n, (t, _) in enumerate(reads(0)[:NE])]
    ncov = covered(0)
    bgap = 3 * n1 - bl
    done_at = {}
    for g, (_, b, idx) in enumerate(fm):
        if b == 1 and idx % 3 == 2: done_at[idx // 3] = g
    wq = sorted(done_at.items(), key=lambda e: e[1])
    emitted = []
    ninst = 0; done_inst = {}
    bar_done = False; e1_state = 0; nw = 0; e1_op = None
    for g, (m, b, idx) in enumerate(fm):
        a(m); ninst += 1
        if b == 1 and idx % 3 == 2: done_inst[idx // 3] = ninst
        nxt = operands(*fm[g + 1][1:]) if g + 1 < len(fm) else set()
        unc = [n for n, (r, _) in enumerate(ops) if n >= ncov and r in nxt]
        assert all(r in [o[0] for o in ops] for r in nxt), ("operand never read", g)
        if unc:
            c = max(unc) + 1
            while c < len(ops) and ops[c][1] <= g - LAM: c += 1
            if ops[max(unc)][1] > g - LAM: print("warning: short read distance at gap", g, g - ops[max(unc)][1], file=sys.stderr)
            a(f"s_waitcnt lgkmcnt({min(15, len(ops) - c)})"); ncov = c
        elif wq and wq[0][0] in done_inst and ninst - done_inst[wq[0][0]] >= 8:
            a(wr_tile(wq.pop(0)[0])); ops.append((None, g)); nw += 1
            if nw == 8: e1_op = len(ops)
        elif not bar_done and g >= bgap:
            a("s_barrier"); bar_done = True
        elif split and e1_state == 0 and e1_op and ops[e1_op - 1][1] <= g - 3 * sd:
            a(f"s_waitcnt lgkmcnt({len(ops) - e1_op})"); e1_state = 1; ncov = max(ncov, e1_op)
        elif split and e1_state == 1:
            a("s_barrier"); e1_state = 2
        elif [e for e in pend if e[1] == 0 or bar_done]:
            e = [e for e in pend if e[1] == 0 or bar_done][0]
            pend.remove(e); a(e[2]); ops.append((dst(e[2]), g))
        else:
            ninst -= 1
        ninst += 1
    assert not pend and bar_done and (e1_state == 2 or not split)
    if stamps: a("s_memtime s[82:83]\ns_memrealtime s[66:67]")
    if probe: a("s_memrealtime s[74:75]")
    for t, _ in wq:
        gap = 8 - (ninst - done_inst[t])
        if gap > 0: a(f"s_nop {gap-1}"); ninst += gap
        a(wr_tile(t)); ninst += 1
    ES = stamps in ("E0", "E4")
    a("s_waitcnt lgkmcnt(0)")
    if ES: a("s_memtime s[58:59]")
    a("s_barrier")
    if ES: a("s_memtime s[56:57]\ns_memtime s[60:61]\ns_memtime s[62:63]\ns_memtime s[68:69]")
    if not (stamps or probe): a("s_endpgm")
    a("L_fin:")
    if stamps or probe: a("s_barrier")
    if L:
        a("s_waitcnt vmcnt(0)\ns_cmp_lg_u32 s19, 0\ns_cbranch_scc1 L_end\ns_waitcnt lgkmcnt(0)")
        for r in (56, 58, 60, 62): a(f"s_sub_u32 s{r}, s{r}, s92")
        stamp_end(a, extra=["s56", "s58", "s60", "s62"], vbase=176)
    elif ES:
        a(f"s_memtime s[84:85]\ns_waitcnt vmcnt(0)\ns_barrier\ns_cmpk_lg_u32 s19, {0 if stamps == 'E0' else 256}\ns_cbranch_scc1 L_end\ns_waitcnt lgkmcnt(0)")
        for r in (82, 58, 56, 60, 62, 68): a(f"s_sub_u32 s{r}, s84, s{r}")
        stamp_end(a, extra=["s82", "s58", "s56", "s60", "s62", "s68"], vbase=176)
    elif stamps:
        a("s_memtime s[84:85]\ns_waitcnt vmcnt(0)\ns_barrier\ns_cmpk_lg_u32 s19, 0x100\ns_cbranch_scc1 L_end\ns_waitcnt lgkmcnt(0)")
        a("s_sub_u32 s80, s80, s92\ns_sub_u32 s82, s82, s92\ns_sub_u32 s84, s84, s92\ns_sub_u32 s66, s66, s64\ns_sub_u32 s64, s64, s90")
        stamp_end(a, extra=["s80", "s82", "s84", "s64", "s66"], vbase=176)
    if probe:
        lo, hi = {"all": ("s70", "s76"), "pro": ("s70", "s72"), "main": ("s72", "s74"), "epi": ("s74", "s76")}[probe]
        a(f"""
        s_cmpk_lt_u32 s19, 0x100
        s_cbranch_scc1 L_end
        s_waitcnt vmcnt(0)
        s_memrealtime s[76:77]
        s_waitcnt lgkmcnt(0)
        s_sub_u32 s78, {hi}, {lo}
        s_lshl_b32 s78, s78, 1
        s_min_u32 s78, s78, 20000
        L_probe:
        s_memrealtime s[60:61]
        s_waitcnt lgkmcnt(0)
        s_sub_u32 s62, s60, s76
        s_cmp_lt_u32 s62, s78
        s_cbranch_scc1 L_probe
        """)
    if stamps or probe: a("L_end:\ns_endpgm")
    a(".fill 288, 4, 0xbf810000\nL_last:")
    ref = "standalone__batchnorm__prompt.s.ref"
    hdr = open(ref).read().split("; Override")[0] if os.path.exists(ref) else ""
    return wrap(a.text(), 256, 512, LDS, vgpr=216, accum=216, header=hdr)

if __name__ == "__main__":
    import ast
    names = []
    for spec in sys.argv[1:]:
        name, _, kw = spec.partition(":")
        d = {}
        for item in filter(None, kw.split(",")):
            kk, v = item.split("=")
            try: v = ast.literal_eval(v)
            except Exception: v = v.replace("+", " ")
            d[kk] = v
        open(name + ".s", "w").write(gen(**d))
        names.append(name + ".s")
    print(" ".join(names))
```

```python
import sys, os
from asmlib import *
from gen2 import sched_tables, sel4

SLOT = 41216
WOFF = 130 * 128
NS = 3
PLANE = SLOT
PARM = NS * SLOT
PLANE1 = PARM + 512
LDS = PLANE1 + 32768

def build(first, touch):
    when = {st: 0 for st in first}
    for slot, q, st in touch: when[st] = slot
    assert sorted(when) == list(range(16)), sorted(when)
    T = []
    for q in range(4):
        mine = {slot: st for slot, qq, st in touch if qq == q}
        mine[0] = first[q]
        order = []
        for slot in range(16):
            if slot in mine: pick = mine[slot]
            else:
                c = [st for st in range(16) if st not in order and st not in mine.values() and when[st] < slot]
                assert c, ("nothing available", q, slot)
                pick = min(c, key=lambda st: (when[st], st))
            order.append(pick)
        assert sorted(order) == list(range(16))
        T.append(order)
    return T

def tables8(sched, gsw):
    perm = list(range(16))
    if sched in ("none", "grp", "s2"):
        T = sched_tables(sched)
        if gsw: perm = [0,1,2,3, 8,9,10,11, 4,5,6,7, 12,13,14,15]
    elif sched == "s2l":
        T = build([0,1,2,3], [(s - 2, s & 3, s) for s in range(4, 16)])
        if gsw: perm = [0,1,2,3, 8,9,10,11, 4,5,6,7, 12,13,14,15]
    elif sched == "s2h":
        T = sched_tables("s2")
        if gsw: perm = [0,1,2,3, 10,11,12,13,14,15, 4,5,6,7,8,9]
    elif sched == "l2":
        touch = [(1, 0, 2), (1, 1, 3), (2, 2, 4), (2, 3, 5)] + [(s - 2, (s - 6) & 3, s) for s in range(6, 16)]
        T = build([0,1,0,1], touch)
        if gsw: perm = [0,1,2,3,4,5, 11,12,13,14,15, 6,7,8,9,10]
    elif sched == "l2b":
        touch = [(1, 0, 2), (1, 1, 3), (2, 2, 4), (3, 3, 5)] + [(s - 2, (s - 6) & 3, s) for s in range(6, 16)]
        T = build([0,1,0,1], touch)
        if gsw: perm = [0,1, 9,10,11,12,13,14,15, 2,3,4,5,6,7,8]
    return T + [[perm[st] for st in t] for t in T]

def gen(stamps=False, sched="s2", nto="sc0 sc1", probe=None, k0=5, k=7, whalf=1, xfirst=0, split=1, prio=1, hops=1, mmap=0, lag=2, e2pos=2, bpos=29, gsw=1, snake=1, lprio=3, sd=1, n1=10, LAM=7, bl=19, tlb=0, e2at=44, il=1, cpf=1, walk=0, pearly=1, nodma=0, skip='', pol='', cwait=1, xsw=0):
    a = Asm()
    L = stamps == "L"
    if probe: a('s_memrealtime s[70:71]')
    if stamps: stamp_begin(a); a("s_load_dwordx2 s[88:89], s[0:1], 64")
    a("""
    s_load_dwordx2 s[4:5], s[0:1], 0
    s_load_dwordx2 s[8:9], s[0:1], 8
    s_load_dwordx8 s[36:43], s[0:1], 16
    s_load_dwordx2 s[12:13], s[0:1], 48
    v_readfirstlane_b32 s19, v0
    s_cmpk_ge_u32 s2, 0x100
    s_cbranch_scc1 L_end
    """)
    if mmap == 0:
        a("s_bfe_u32 s21, s2, 0x30003\ns_and_b32 s22, s2, 4\ns_lshl1_add_u32 s23, s22, s21")
    else:
        a("s_bfe_u32 s23, s2, 0x40002\ns_lshr_b32 s21, s23, 1")
    a("""
    s_and_b32 s22, s2, 3
    s_lshr_b32 s25, s2, 6
    s_lshl2_add_u32 s24, s22, s25
    s_lshl_b32 s23, s23, 18
    s_lshl_b32 s24, s24, 7
    s_cmpk_ge_u32 s19, 0x100
    """)
    if cpf:
        a(f"""
        s_cbranch_scc0 L_load
        s_getpc_b64 s[16:17]
        L_pc:
        s_lshl_b32 s26, s2, 5
        s_and_b32 s26, s26, 0xf00
        s_add_u32 s26, s26, s19
        s_lshl_b32 s26, s26, 1
        s_min_u32 s26, s26, L_last-L_pc-128
        s_add_u32 s27, s26, 64
        s_load_dword s44, s[16:17], s26
        s_load_dword s44, s[16:17], s27
        {"s_waitcnt lgkmcnt(0)" if cwait else ""}
        s_branch L_cons
        L_load:
        """)
    else:
        a("s_cbranch_scc1 L_cons")
    T = tables8(sched, gsw)
    first = [t[0] for t in T]
    a(f"""
    v_bfe_u32 v2, v0, 3, 3
    v_and_b32 v3, 7, v0
    v_bfe_u32 v4, v0, 4, 2
    v_xor_b32 v5, v3, v4
    s_lshl_b32 s50, s19, {5 if xsw else 6}
    s_add_u32 s26, s50, s23
    v_lshl_add_u32 v5, v5, 4, s26
    v_lshl_add_u32 v5, v2, 14, v5
    v_xor_b32 v6, 64, v5
    v_add_u32 v6, {131072-1024}, v6
    v_and_b32 v4, 2, v2
    v_xor_b32 v7, v4, v3
    s_lshl_b32 s26, s19, 9
    s_add_u32 s26, s26, s24
    v_lshl_add_u32 v7, v7, 4, s26
    v_lshl_add_u32 v7, v2, 11, v7
    s_mul_i32 s51, s19, 96
    s_addk_i32 s51, {WOFF}
    """)
    if xsw:
        a("""
        s_and_b32 s46, s2, 2
        s_lshl_b32 s46, s46, 12
        s_xor_b32 s47, s46, 0x2000
        s_add_u32 s53, s50, s47
        s_add_u32 s50, s50, s46
        """)
    if whalf:
        a(f"""
        s_bitcmp1_b32 s2, 5
        s_cselect_b32 s26, 0x4040, 0
        s_cselect_b32 s27, 3072, 0
        v_xor_b32 v7, s26, v7
        s_sub_u32 s52, s51, s27
        s_add_u32 s51, s51, s27
        s_addk_i32 s52, 3072
        """)
    else:
        a("s_add_u32 s52, s51, 3072")
    a(f"""
    v_xor_b32 v8, 0x4040, v7
    v_mul_u32_u24 v9, 7, v2
    v_xor_b32 v9, v9, v3
    s_add_u32 s26, s23, 0x40000
    v_lshl_add_u32 v9, v9, 4, s26
    s_mov_b32 s26, {(-0x40800) & 0xffffffff}
    v_mad_i32_i24 v9, v2, s26, v9
    s_add_u32 s29, s21, s25
    s_and_b32 s29, s29, 3
    """)
    if first == [0] * 8: a("s_mov_b32 s54, 0")
    elif first == [0, 1, 2, 3] * 2: a("s_mov_b32 s54, s29")
    elif first == [0, 1] * 4: a("s_and_b32 s54, s29, 1")
    else: raise ValueError(first)
    a(f"""
    s_mov_b32 s6, 0x400000
    s_mov_b32 s7, 0x20000
    s_mov_b32 s10, 0x600000
    s_mov_b32 s11, 0x20000
    s_cmp_eq_u32 s19, 0
    s_cselect_b64 vcc, -1, 0
    s_mov_b32 s30, 0
    s_mov_b32 s33, 0
    {"s_memtime s[56:57]" if L else ""}
    s_waitcnt lgkmcnt(0)
    {"s_memtime s[58:59]" if L else ""}
    L_adv:
    s_and_b32 s31, s54, 15
    s_lshl_b32 s32, s31, 17
    s_lshl_b32 s31, s31, 7
    """)
    X, W = "s[4:7]", "s[8:11]"
    xp = [("s50", f"buffer_load_dwordx4 v{5 + (n & 1)}, {X}, s31 offen offset:{n*1024} {pol} lds") for n in range(4)]
    if xsw:
        a("s_add_u32 s48, s31, s46\ns_add_u32 s49, s31, s47")
        xp = [(["s50", "s53"][n >> 1], f"buffer_load_dwordx4 v{5 + (n & 1)}, {X}, s{48 + (n >> 1)} offen offset:{(n & 1)*1024} {pol} lds") for n in range(4)]
    wa = [("s51", f"buffer_load_dwordx4 v7, {W}, s{[32,34,35][t]} offen offset:{t*1024} {pol} lds") for t in range(3)]
    wb = [("s52", f"buffer_load_dwordx4 v8, {W}, s{[32,34,35][t]} offen offset:{t*1024} {pol} lds") for t in range(3)]
    pieces = (xp + wa + wb) if xfirst else (wa + xp + wb)
    hpos = 1
    def bar(n, cond):
        a(f"""
        {cond}
        s_cbranch_scc0 L_nb{n}
        s_waitcnt vmcnt({n+1})
        s_cbranch_vccnz L_b{n}
        s_waitcnt vmcnt({n})
        L_b{n}:
        {"s_cmp_lg_u32 s30, 1; s_cbranch_scc1 L_st1; s_memtime s[62:63]; L_st1:".replace("; ", chr(10)) if L and n == k0 else ""}
        s_barrier
        L_nb{n}:
        """)
    cur = None
    extra = [f"s_add_u32 s34, s32, {0x200000-1024}", f"s_add_u32 s35, s32, {0x400000-2048}", "s_lshr_b64 s[54:55], s[54:55], 4"]
    for n in range(11):
        if n == k0 and k0 == k: bar(n, "s_cmp_ge_u32 s30, 1")
        elif n == k0: bar(n, "s_cmp_eq_u32 s30, 1")
        elif n == k: bar(n, "s_cmp_ge_u32 s30, 2")
        if n == 10: break
        if n == hpos:
            a(f"""
            s_cbranch_vccz L_nh
            s_add_u32 m0, s33, 16384
            s_mov_b64 exec, 0xffff
            buffer_load_dwordx4 v9, {X}, s31 offen lds
            s_mov_b64 exec, -1
            L_nh:
            """)
            cur = None
        m, ins = pieces[n]
        if m != cur:
            a(f"s_add_u32 m0, s33, {m}")
            a(extra.pop(0) if extra else "s_nop 0")
            cur = m
        if n == 1:
            while len(extra) > 1: a(extra.pop(0))
        if nodma: a(f"s_cmp_ge_u32 s30, 3\ns_cbranch_scc1 L_sk{n}")
        a(ins)
        if nodma: a(f"L_sk{n}:")
    for e in extra: a(e)
    a(f"""
    s_add_u32 s33, s33, {SLOT}
    s_cmp_ge_u32 s33, {SLOT*NS}
    s_cselect_b32 s33, 0, s33
    s_add_u32 s30, s30, 1
    s_cmp_lg_u32 s30, 1
    s_cbranch_scc1 L_nt
    {"s_memtime s[60:61]" if L else ""}
    {"s_waitcnt vmcnt(10); s_memtime s[64:65]; s_waitcnt vmcnt(7); s_memtime s[66:67]; s_waitcnt vmcnt(3); s_memtime s[68:69]".replace("; ", chr(10)) if L else ""}
    """)
    a("""
    s_lshl_b32 s26, s2, 2
    s_xor_b32 s26, s26, s2
    s_and_b32 s26, s26, 4
    s_add_u32 s26, s26, s29
    s_lshl_b32 s26, s26, 3
    s_getpc_b64 s[16:17]
    L_pc2:
    s_add_u32 s26, s26, L_tab-L_pc2
    s_load_dwordx2 s[54:55], s[16:17], s26
    s_waitcnt lgkmcnt(0)
    """)
    a(f"""
    L_nt:
    s_cmp_lt_u32 s30, 16
    s_cbranch_scc1 L_adv
    v_and_b32 v16, 63, v0
    v_lshl_add_u32 v11, v16, 1, s24
    s_waitcnt lgkmcnt(0)
    global_load_ushort v12, v11, s[36:37]
    global_load_ushort v13, v11, s[38:39]
    global_load_ushort v14, v11, s[40:41]
    global_load_ushort v15, v11, s[42:43]
    {"v_mov_b32 v17, s23" if tlb == 1 else ""}
    {"v_lshl_add_u32 v17, v16, 12, s23" if tlb == 2 else ""}
    {"global_load_ushort v18, v17, s[12:13]" if tlb else ""}
    s_waitcnt vmcnt({5 if tlb else 4})
    s_barrier
    """)
    ER, PA, O0, ER1, AL = 200, 202, 203, 205, 207
    def epi_addr():
        a(f"""
        v_bfe_u32 v1, v0, 3, 3
        v_and_b32 v2, 7, v0
        v_lshlrev_b32 v3, 1, v2
        v_xor_b32 v3, v3, v1
        s_lshl_b32 s26, s19, 6
        s_add_u32 s26, s26, {PLANE}
        v_lshl_add_u32 v3, v3, 4, s26
        v_lshl_add_u32 v{ER}, v1, 8, v3
        v_xor_b32 v{ER+1}, 16, v{ER}
        v_add_u32 v{ER1}, {PLANE1-PLANE}, v{ER}
        v_add_u32 v{ER1+1}, {PLANE1-PLANE}, v{ER+1}
        v_lshlrev_b32 v3, 5, v2
        v_add_u32 v{PA}, {PARM}, v3
        v_and_b32 v3, 3, v1
        v_lshrrev_b32 v1, 2, v1
        v_lshl_add_u32 v1, v3, 1, v1
        s_lshl_b32 s26, s19, 5
        s_add_u32 s26, s26, s23
        s_add_u32 s26, s26, s24
        v_lshl_add_u32 v3, v2, 4, s26
        v_lshl_add_u32 v{O0}, v1, 14, v3
        v_xor_b32 v{O0+1}, 0x4000, v{O0}
        s_mov_b32 s14, 0x400000
        s_mov_b32 s15, 0x20000
        s_mov_b32 s26, 0xbfb8aa3b
        s_mov_b32 s28, 0x20000
        s_movk_i32 s27, 0x2000
        s_mov_b32 s29, 0x22000
        """)
    epi_addr()
    a(f"""
    v_lshlrev_b32 v16, 2, v16
    v_add_u32 v16, {PARM}, v16
    s_waitcnt vmcnt({1 if tlb else 0})
    v_lshlrev_b32 v13, 16, v13
    v_add_f32 v13, 0x3727c5ac, v13
    v_rsq_f32 v13, v13
    v_lshlrev_b32 v12, 16, v12
    v_lshlrev_b32 v14, 16, v14
    v_lshlrev_b32 v15, 16, v15
    v_mul_f32 v13, v13, v14
    v_fma_f32 v15, -v12, v13, v15
    v_mul_f32 v13, s26, v13
    v_mul_f32 v15, s26, v15
    {f"s_setprio {lprio}" if lprio else ""}
    ds_write_b32 v16, v13
    ds_write_b32 v16, v15 offset:256
    """)
    ES = stamps in ("E0", "E4")
    PS, PT = 64, 72
    prd = f"ds_read_b128 v[{PS}:{PS+3}], v{PA}\nds_read_b128 v[{PT}:{PT+3}], v{PA} offset:256\nds_read_b128 v[{PS+4}:{PS+7}], v{PA} offset:16\nds_read_b128 v[{PT+4}:{PT+7}], v{PA} offset:272"
    a("L_epi:")
    if pearly: a(prd)
    if walk: a("s_cmp_eq_u32 s28, s28\ns_branch L_wk0\nL_wkb:\ns_cmp_lg_u32 s28, s28")
    a("s_waitcnt lgkmcnt(0)\ns_barrier")
    PS, PT = 64, 72
    P = lambda rr, pl: 80 + (rr * 2 + pl) * 8
    def rd(rr):
        return [f"ds_read_b128 v[{P(rr,pl)+4*e}:{P(rr,pl)+4*e+3}], v{(ER1 if pl else ER)+e} offset:{(rr & 1)*2048 + (rr >> 1)*16384}" for pl in range(2) for e in range(2)]
    for t in rd(0): a(t)
    if not pearly: a(prd)
    for t in rd(1): a(t)
    if lprio == 3: a("s_setprio 0")
    a("s_waitcnt lgkmcnt(0)")
    def row(rr):
        y = P(rr, 0); p = P(rr, 1); z = 144 + 8 * (rr & 1); o = 160 + 4 * rr
        A = [f"v_pk_add_f32 v[{y+2*n}:{y+2*n+1}], v[{y+2*n}:{y+2*n+1}], v[{p+2*n}:{p+2*n+1}]" for n in range(4)]
        B = [f"v_pk_fma_f32 v[{y+2*n}:{y+2*n+1}], v[{y+2*n}:{y+2*n+1}], v[{PS+2*n}:{PS+2*n+1}], v[{PT+2*n}:{PT+2*n+1}]" for n in range(4)]
        E = [f"v_exp_f32 v{z+n}, v{y+n}" for n in range(8)]
        C = [f"v_pk_fma_f32 v[{z+2*n}:{z+2*n+1}], v[{z+2*n}:{z+2*n+1}], s[26:27], s[26:27] op_sel_hi:[1,0,0]" for n in range(4)]
        Rr = [f"v_rcp_f32 v{z+n}, v{z+n}" for n in range(8)]
        M = [f"v_pk_mul_f32 v[{y+2*n}:{y+2*n+1}], v[{y+2*n}:{y+2*n+1}], v[{z+2*n}:{z+2*n+1}]" for n in range(4)]
        V = [f"v_cvt_pk_bf16_f32 v{o+n}, v{y+2*n}, v{y+2*n+1}" for n in range(4)]
        S = [f"buffer_store_dwordx4 v[{o}:{o+3}], v{O0+(rr & 1)}, s[12:15], {['0', 's28', 's27', 's29'][rr]} offen {nto}"]
        if il: return [A[0], A[1], B[0], A[2], B[1], E[0], A[3], E[1], B[2], E[2], B[3], E[3], C[0], E[4], E[5], C[1], E[6], E[7], C[2], Rr[0], Rr[1], C[3], Rr[2], Rr[3], M[0], Rr[4], Rr[5], M[1], Rr[6], V[0], Rr[7], M[2], V[1], M[3], V[2], V[3]] + S
        return A + B + E + C + Rr + M + V + S
    first = row(0) + row(1)
    late = ["s_barrier"] + rd(2) + rd(3)
    for n, t in enumerate(first):
        a(t)
        if n >= e2at and late and ("v_exp" in t or "v_rcp" in t): a(late.pop(0))
        if walk and n == 42: a("L_wk0:\ns_cbranch_scc1 L_wk1")
        if ES and n == 36: a("s_memtime s[60:61]")
        if n == 67 and not ES:
            assert not late
            a("s_waitcnt lgkmcnt(4)")
        if ES and n == 72: a("s_memtime s[56:57]")
        if ES and n == e2at - 1: a("s_memtime s[82:83]")
        if ES and n == e2at + 1: a("s_memtime s[58:59]")
    for t in late: a(t)
    if ES: a("s_waitcnt lgkmcnt(0)")
    if ES: a("s_memtime s[62:63]")
    for n, t in enumerate(row(2)):
        a(t)
        if walk and n == 5: a("L_wk1:\ns_cbranch_scc1 L_wk2")
        if n == 7 and not ES: a("s_waitcnt lgkmcnt(0)")
    for n, t in enumerate(row(3)):
        a(t)
        if walk and n == 5: a("L_wk2:\ns_cbranch_scc1 L_wkb")
    if ES: a("s_memtime s[68:69]")
    a("s_branch L_fin" if (stamps or probe) else "L_end:\ns_endpgm")
    R, NT, CR = 8, 2, 4
    ACC = lambda j, u: (j * NT + u) * CR
    FR = 64
    XF = lambda buf, j: 64 + buf * FR + (j + 1) * 4
    WF = lambda buf, kk, u: 64 + buf * FR + 40 + (kk * NT + u) * 4
    AX = lambda cls: 192 + cls
    AW = lambda u: 195 + u
    EW = lambda u: 197 + u
    ADDR = list(range(192, 197))
    a("L_cons:")
    a("s_waitcnt lgkmcnt(0)\ns_add_u32 s27, s24, 64")
    for r in (36, 38, 40, 42):
        a(f"s_load_dword s44, s[{r}:{r+1}], s24\ns_load_dword s44, s[{r}:{r+1}], s27")

    if prio: a(f"s_setprio {prio}")
    a(f"""
    v_and_b32 v10, 15, v0
    v_bfe_u32 v11, v0, 4, 2
    v_lshrrev_b32 v1, 2, v10
    v_lshrrev_b32 v2, 3, v10
    v_xor_b32 v1, v1, v2
    v_and_b32 v1, 1, v1
    v_and_b32 v2, 3, v10
    v_lshl_add_u32 v1, v2, 1, v1
    v_and_or_b32 v1, v10, 8, v1
    v_bfe_u32 v12, v0, 7, 1
    v_bfe_u32 v13, v0, 6, 1
    v_lshl_add_u32 v2, v12, 2, v11
    v_lshrrev_b32 v4, 1, v1
    v_xor_b32 v4, v4, v2
    v_lshlrev_b32 v4, 4, v4
    v_lshl_add_u32 v{AX(1)}, v1, 7, v4
    v_add_u32 v3, -1, v1
    v_bfe_u32 v4, v3, 1, 3
    v_xor_b32 v4, v4, v2
    v_lshlrev_b32 v4, 4, v4
    v_ashrrev_i32 v5, 31, v3
    v_and_b32 v5, 18, v5
    v_add_u32 v3, 0x70, v3
    v_add_u32 v3, v3, v5
    v_lshl_add_u32 v{AX(0)}, v3, 7, v4
    v_add_u32 v3, 1, v1
    v_bfe_u32 v4, v3, 1, 3
    v_xor_b32 v4, v4, v2
    v_lshlrev_b32 v4, 4, v4
    v_and_b32 v5, 16, v3
    v_and_b32 v3, 15, v3
    v_lshl_add_u32 v3, v5, 3, v3
    v_lshl_add_u32 v{AX(2)}, v3, 7, v4
    v_mul_u32_u24 v2, 3072, v2
    v_bfe_u32 v4, v0, 2, 2
    v_lshl_add_u32 v2, v4, 7, v2
    v_and_b32 v5, 3, v0
    v_lshl_add_u32 v2, v5, 3, v2
    v_and_b32 v3, 1, v11
    v_xor_b32 v3, v3, v13
    v_lshrrev_b32 v4, 1, v4
    v_lshl_add_u32 v3, v3, 1, v4
    v_lshl_add_u32 v2, v3, 5, v2
    v_add_u32 v{AW(0)}, {WOFF}, v2
    v_xor_b32 v{AW(1)}, 32, v{AW(0)}
    v_lshl_add_u32 v2, v13, 3, v11
    v_and_b32 v3, 7, v10
    v_xor_b32 v2, v2, v3
    v_lshlrev_b32 v2, 4, v2
    v_lshl_add_u32 v2, v10, 8, v2
    v_mul_u32_u24 v3, {PLANE1-PLANE}, v12
    v_add_u32 v2, v2, v3
    v_add_u32 v{EW(0)}, {PLANE}, v2
    v_xor_b32 v{EW(1)}, 64, v{EW(0)}
    """)
    for n, r in enumerate(ADDR): a(f"v_mov_b32 v{AL+n}, v{r}")
    for r in range(0, 64, 2): a(f"v_mov_b64 v[{r}:{r+1}], 0")
    a(f"s_mov_b32 s30, 0\ns_mov_b32 s33, 0\ns_mov_b32 s35, {SLOT}\ns_waitcnt lgkmcnt(0)")
    tiles = [(j, 0) for j in range(4)] + [(j, 1) for j in range(4)] + [(j, 1) for j in range(4, 8)] + [(j, 0) for j in range(4, 8)]
    order = []
    for n, (j, u) in enumerate(tiles):
        taps = (2, 1, 0) if (snake and n & 1) else (0, 1, 2)
        order += [(kk, u, j) for kk in taps]
    def reads(buf):
        def xr(j):
            cls = 0 if j == -1 else (2 if j == R else 1)
            off = j * 2048 if cls == 1 else 0
            r = XF(buf, j)
            return [f"ds_read_b128 v[{r}:{r+3}], v{AX(cls)} offset:{off}"]
        def wr(kk, u):
            r = WF(buf, kk, u)
            return [f"ds_read_b64_tr_b16 v[{r+2*e}:{r+2*e+1}], v{AW(u)} offset:{kk*1024 + e*512}" for e in range(2)]
        Lr = []; seen = set()
        for n, (kk, u, j) in enumerate(order):
            if ("w", kk, u) not in seen: seen.add(("w", kk, u)); Lr += [(t, n) for t in wr(kk, u)]
            if ("x", j + kk - 1) not in seen: seen.add(("x", j + kk - 1)); Lr += [(t, n) for t in xr(j + kk - 1)]
        return Lr
    def mfmas(buf):
        return [f"v_mfma_f32_16x16x32_bf16 v[{ACC(j,u)}:{ACC(j,u)+3}], v[{WF(buf,kk,u)}:{WF(buf,kk,u)+3}], v[{XF(buf,j+kk-1)}:{XF(buf,j+kk-1)+3}], v[{ACC(j,u)}:{ACC(j,u)+3}]" for (kk, u, j) in order]
    upd = [f"s_add_u32 s33, s33, 1", "s_cmp_eq_u32 s33, 3", f"s_cselect_b32 s34, {(-2*SLOT) & 0xffffffff}, s35", "s_cselect_b32 s33, 0, s33"] + [f"v_add_u32 v{r}, s34, v{r}" for r in ADDR]
    NE = min(22, 45 - bpos)
    WAITS = [-2, 2 if snake else 4, 10, 23]
    need = [n for _, n in reads(0)]
    def covered(wi):
        if wi == len(WAITS) - 1: return 22
        return sum(1 for n in need if n <= WAITS[wi + 1])
    def wr_tile(t):
        j, u = tiles[t]
        return f"ds_write_b128 v{EW(u)}, v[{ACC(j,u)}:{ACC(j,u)+3}] offset:{j*4096}"
    def step(buf, kind):
        late = [t for t, _ in reads(buf)[NE:]]
        early = [t for t, _ in reads(buf ^ 1)[:NE]]
        for key, pat in (("x", "b128"), ("w", "tr_b16")):
            if key in skip:
                late = ["s_nop 0" if pat in t else t for t in late]
                early = ["s_nop 0" if pat in t else t for t in early]
        misc = list(upd) + (["s_add_u32 s30, s30, 1", "s_cmp_lt_u32 s30, 7"] if kind == 1 else [])
        ops = list(range(NE))
        nr = NE
        for g, m in enumerate(mfmas(buf)):
            a(m)
            if kind == "tail" and g % 3 == 2 and g // 3 >= lag:
                a(wr_tile(g // 3 - lag)); ops.append("w")
            elif g in WAITS or (kind == "tail" and g + 1 in WAITS and (g + 1) % 3 == 2 and (g + 1) // 3 >= lag):
                wi = WAITS.index(g) if g in WAITS else WAITS.index(g + 1)
                c = covered(wi)
                assert nr >= c, (g, nr, c)
                a(f"s_waitcnt lgkmcnt({len(ops) - 1 - ops.index(c - 1)})")
            elif late:
                a(late.pop(0)); ops.append(nr); nr += 1
            elif kind == "tail":
                if split and g == 3 * (8 + lag + sd): a(f"s_waitcnt lgkmcnt({sd})")
                if split and g == 3 * (8 + lag + sd) + 1: a("s_barrier")
            elif g < bpos:
                if misc: a(misc.pop(0))
            elif g == bpos:
                assert not misc and g > WAITS[-1]
                a("s_barrier")
            elif early: a(early.pop(0))
            elif g == 46: a(f"s_waitcnt lgkmcnt({NE - covered(0)})")
            elif g == 47 and kind == 1: a("s_cbranch_scc1 L_cloop")
    a("s_barrier")
    if stamps: a("s_memtime s[80:81]\ns_memrealtime s[64:65]\ns_waitcnt lgkmcnt(0)")
    if probe: a("s_memrealtime s[72:73]\ns_waitcnt lgkmcnt(0)")
    if skip:
        for t, _ in reads(0) + reads(1): a(t)
    for t, _ in reads(0)[:NE]: a(t)
    a(f"s_waitcnt lgkmcnt({NE - covered(0)})")
    a("L_cloop:")
    step(0, 0)
    step(1, 1)
    seq = [(0, t) for t in range(n1)] + [(1, t) for t in range(8)]
    for t in range(8, 16): seq += ([(0, t)] if t >= n1 else []) + [(1, t)]
    MF = [mfmas(0), mfmas(1)]
    fm = []
    for b, t in seq: fm += [(MF[b][3*t+g], b, 3*t+g) for g in range(3)]
    def operands(b, idx):
        kk, u, j = order[idx]
        return {XF(b, j + kk - 1), WF(b, kk, u), WF(b, kk, u) + 2}
    dst = lambda text: int(text.split("v[")[1].split(":")[0])
    first_use = {}
    for g, (_, b, idx) in enumerate(fm):
        for r in operands(b, idx): first_use.setdefault(r, g)
    r15 = [t for t, _ in reads(1)]
    for n, r in enumerate(ADDR): r15 = [t.replace(f", v{r} ", f", v{AL+n} ") for t in r15]
    pend = [(first_use[dst(t)], 0, t) for t, _ in reads(0)[NE:]] + [(first_use[dst(t)], 1, t) for t in r15]
    pend.sort(key=lambda e: e[0])
    ops = [(dst(t), -2 - NE + n) for n, (t, _) in enumerate(reads(0)[:NE])]
    ncov = covered(0)
    bgap = 3 * n1 - bl
    done_at = {}
    for g, (_, b, idx) in enumerate(fm):
        if b == 1 and idx % 3 == 2: done_at[idx // 3] = g
    wq = sorted(done_at.items(), key=lambda e: e[1])
    emitted = []
    ninst = 0; done_inst = {}
    bar_done = False; e1_state = 0; nw = 0; e1_op = None
    for g, (m, b, idx) in enumerate(fm):
        a(m); ninst += 1
        if b == 1 and idx % 3 == 2: done_inst[idx // 3] = ninst
        nxt = operands(*fm[g + 1][1:]) if g + 1 < len(fm) else set()
        unc = [n for n, (r, _) in enumerate(ops) if n >= ncov and r in nxt]
        assert all(r in [o[0] for o in ops] for r in nxt), ("operand never read", g)
        if unc:
            c = max(unc) + 1
            while c < len(ops) and ops[c][1] <= g - LAM: c += 1
            if ops[max(unc)][1] > g - LAM: print("warning: short read distance at gap", g, g - ops[max(unc)][1], file=sys.stderr)
            a(f"s_waitcnt lgkmcnt({min(15, len(ops) - c)})"); ncov = c
        elif wq and wq[0][0] in done_inst and ninst - done_inst[wq[0][0]] >= 8:
            a(wr_tile(wq.pop(0)[0])); ops.append((None, g)); nw += 1
            if nw == 8: e1_op = len(ops)
        elif not bar_done and g >= bgap:
            a("s_barrier"); bar_done = True
        elif split and e1_state == 0 and e1_op and ops[e1_op - 1][1] <= g - 3 * sd:
            a(f"s_waitcnt lgkmcnt({len(ops) - e1_op})"); e1_state = 1; ncov = max(ncov, e1_op)
        elif split and e1_state == 1:
            a("s_barrier"); e1_state = 2
        elif [e for e in pend if e[1] == 0 or bar_done]:
            e = [e for e in pend if e[1] == 0 or bar_done][0]
            pend.remove(e); a(e[2]); ops.append((dst(e[2]), g))
        else:
            ninst -= 1
        ninst += 1
    assert not pend and bar_done and (e1_state == 2 or not split)
    if stamps: a("s_memtime s[82:83]\ns_memrealtime s[66:67]")
    if probe: a("s_memrealtime s[74:75]")
    for t, _ in wq:
        gap = 8 - (ninst - done_inst[t])
        if gap > 0: a(f"s_nop {gap-1}"); ninst += gap
        a(wr_tile(t)); ninst += 1
    ES = stamps in ("E0", "E4")
    a("s_waitcnt lgkmcnt(0)")
    if ES: a("s_memtime s[58:59]")
    a("s_barrier")
    if ES: a("s_memtime s[56:57]\ns_memtime s[60:61]\ns_memtime s[62:63]\ns_memtime s[68:69]")
    if not (stamps or probe): a("s_endpgm")
    a("L_fin:")
    if stamps or probe: a("s_barrier")
    if L:
        a("s_waitcnt vmcnt(0)\ns_cmp_lg_u32 s19, 0\ns_cbranch_scc1 L_end\ns_waitcnt lgkmcnt(0)")
        for r in (56, 58, 60, 64, 66, 68, 62): a(f"s_sub_u32 s{r}, s{r}, s92")
        stamp_end(a, extra=["s56", "s58", "s60", "s64", "s66", "s68", "s62"], vbase=176)
    elif ES:
        a(f"s_memtime s[84:85]\ns_waitcnt vmcnt(0)\ns_barrier\ns_cmpk_lg_u32 s19, {0 if stamps == 'E0' else 256}\ns_cbranch_scc1 L_end\ns_waitcnt lgkmcnt(0)")
        for r in (82, 58, 56, 60, 62, 68): a(f"s_sub_u32 s{r}, s84, s{r}")
        stamp_end(a, extra=["s82", "s58", "s56", "s60", "s62", "s68"], vbase=176)
    elif stamps:
        a("s_memtime s[84:85]\ns_waitcnt vmcnt(0)\ns_barrier\ns_cmpk_lg_u32 s19, 0x100\ns_cbranch_scc1 L_end\ns_waitcnt lgkmcnt(0)")
        a("s_sub_u32 s80, s80, s92\ns_sub_u32 s82, s82, s92\ns_sub_u32 s84, s84, s92\ns_sub_u32 s66, s66, s64\ns_sub_u32 s64, s64, s90")
        stamp_end(a, extra=["s80", "s82", "s84", "s64", "s66"], vbase=176)
    if probe:
        lo, hi = {"all": ("s70", "s76"), "pro": ("s70", "s72"), "main": ("s72", "s74"), "epi": ("s74", "s76")}[probe]
        a(f"""
        s_cmpk_lt_u32 s19, 0x100
        s_cbranch_scc1 L_end
        s_waitcnt vmcnt(0)
        s_memrealtime s[76:77]
        s_waitcnt lgkmcnt(0)
        s_sub_u32 s78, {hi}, {lo}
        s_lshl_b32 s78, s78, 1
        s_min_u32 s78, s78, 20000
        L_probe:
        s_memrealtime s[60:61]
        s_waitcnt lgkmcnt(0)
        s_sub_u32 s62, s60, s76
        s_cmp_lt_u32 s62, s78
        s_cbranch_scc1 L_probe
        """)
    if stamps or probe: a("L_end:\ns_endpgm")
    a(".p2align 6\nL_tab:")
    for t in T:
        p = sum(st << (4 * i) for i, st in enumerate(t[1:]))
        a(f".long {p & 0xffffffff:#x}, {p >> 32:#x}")
    a(".fill 272, 4, 0xbf810000\nL_last:")
    ref = "standalone__batchnorm__prompt.s.ref"
    hdr = open(ref).read().split("; Override")[0] if os.path.exists(ref) else ""
    return wrap(a.text(), 256, 512, LDS, vgpr=216, accum=216, header=hdr)

if __name__ == "__main__":
    import ast
    names = []
    for spec in sys.argv[1:]:
        name, _, kw = spec.partition(":")
        d = {}
        for item in filter(None, kw.split(",")):
            kk, v = item.split("=")
            try: v = ast.literal_eval(v)
            except Exception: v = v.replace("+", " ")
            d[kk] = v
        open(name + ".s", "w").write(gen(**d))
        names.append(name + ".s")
    print(" ".join(names))
```

```python
import sys, os
from asmlib import *

SLOT = 41216
WOFF = 130 * 128
NS = 3
PLANE = SLOT
PARM = NS * SLOT
PLANE1 = PARM + 512
FLAG = PLANE1 + 32768
LDS = FLAG + 1024

def build(first, touch):
    when = {st: 0 for st in first}
    for slot, q, st in touch: when[st] = slot
    assert sorted(when) == list(range(16))
    T = []
    for q in range(4):
        mine = {slot: st for slot, qq, st in touch if qq == q}
        mine[0] = first[q]
        order = []
        for slot in range(16):
            if slot in mine: pick = mine[slot]
            else: pick = min((st for st in range(16) if st not in order and st not in mine.values() and when[st] < slot), key=lambda st: (when[st], st))
            order.append(pick)
        assert sorted(order) == list(range(16))
        T.append(order)
    return T

def gen(stamps=False, nto="sc0 sc1 nt", k0=5, k=8, prio=3, bpos=29, sd=1, n1=10, LAM=7, bl=19, ahead=2,
        lprio=0, cpf=1, vper=2, nopf=1, cp2=0, wsp=3, epg=37, wfirst=0, ntm=15):
    a = Asm()
    c = lambda t: a.l.append("    ; " + t)
    P = stamps == "P"
    T = build([0, 1, 2, 3], [(s - ahead, s & 3, s) for s in range(4, 16)])
    if stamps: stamp_begin(a); a("s_load_dwordx2 s[88:89], s[0:1], 64")
    c("---- entry: pointers, tile coordinates.  XCD (wg & 7) owns 8 x 4 tiles of 128 rows x 64 columns")
    a("""
    s_load_dwordx2 s[4:5], s[0:1], 0
    s_load_dwordx2 s[8:9], s[0:1], 8
    s_load_dwordx8 s[36:43], s[0:1], 16
    s_load_dwordx2 s[12:13], s[0:1], 48
    v_readfirstlane_b32 s19, v0
    s_cmpk_ge_u32 s2, 0x100
    s_cbranch_scc1 L_end
    s_bfe_u32 s21, s2, 0x30003
    s_and_b32 s22, s2, 4
    s_lshl1_add_u32 s23, s22, s21
    s_and_b32 s22, s2, 3
    s_lshr_b32 s25, s2, 6
    s_lshl2_add_u32 s24, s22, s25
    s_lshl_b32 s23, s23, 18
    s_lshl_b32 s24, s24, 7
    s_cmpk_ge_u32 s19, 0x100
    """)
    c("s23 = row tile * 128 * 2048 B, s24 = column tile * 128 B, s19 = first thread id of the wave")
    if cpf:
        a("s_cbranch_scc0 L_load")
        c("waves 4-7 (MFMA waves): read one 128-B line of this kernel's code each, so that it is in L2 before it is fetched")
        a("""
        s_getpc_b64 s[16:17]
        L_pc:
        s_lshl_b32 s26, s2, 5
        s_and_b32 s26, s26, 0xf00
        s_add_u32 s26, s26, s19
        s_lshl_b32 s26, s26, 1
        s_min_u32 s26, s26, L_last-L_pc-128
        s_load_dword s44, s[16:17], s26
        s_load_dword s44, s[16:17], s26 offset:64
        s_waitcnt lgkmcnt(0)
        s_branch L_cons
        L_load:
        """)
    else:
        a("s_cbranch_scc1 L_cons")
    c("---- waves 0-3: LDS-DMA loaders.  v5/v6: x pieces, v7/v8: W pieces (own / partner half), v9: halo rows")
    a(f"""
    v_bfe_u32 v2, v0, 3, 3
    v_and_b32 v3, 7, v0
    v_bfe_u32 v4, v0, 4, 2
    v_xor_b32 v5, v3, v4
    s_lshl_b32 s50, s19, 6
    s_add_u32 s26, s50, s23
    v_lshl_add_u32 v5, v5, 4, s26
    v_lshl_add_u32 v5, v2, 14, v5
    v_xor_b32 v6, 64, v5
    v_add_u32 v6, {131072-1024}, v6
    v_and_b32 v4, 2, v2
    v_xor_b32 v7, v4, v3
    s_lshl_b32 s26, s19, 9
    s_add_u32 s26, s26, s24
    v_lshl_add_u32 v7, v7, 4, s26
    v_lshl_add_u32 v7, v2, 11, v7
    s_mul_i32 s51, s19, 96
    s_addk_i32 s51, {WOFF}
    s_bitcmp1_b32 s2, 5
    s_cselect_b32 s26, 0x4040, 0
    s_cselect_b32 s27, 3072, 0
    v_xor_b32 v7, s26, v7
    s_sub_u32 s52, s51, s27
    s_add_u32 s51, s51, s27
    s_addk_i32 s52, 3072
    v_xor_b32 v8, 0x4040, v7
    v_mul_u32_u24 v9, 7, v2
    v_xor_b32 v9, v9, v3
    s_add_u32 s26, s23, 0x40000
    v_lshl_add_u32 v9, v9, 4, s26
    s_mov_b32 s26, {(-0x40800) & 0xffffffff}
    v_mad_i32_i24 v9, v2, s26, v9
    s_add_u32 s29, s21, s25
    s_and_b32 s29, s29, 3
    s_mov_b32 s54, s29
    s_mov_b32 s6, 0x400000
    s_mov_b32 s7, 0x20000
    s_mov_b32 s10, 0x600000
    s_mov_b32 s11, 0x20000
    s_cmp_eq_u32 s19, 0
    s_cselect_b64 vcc, -1, 0
    s_mov_b32 s30, 0
    s_mov_b32 s33, 0
    v_mov_b32 v213, 0
    s_mov_b64 s[14:15], s[6:7]
    s_waitcnt lgkmcnt(0)
    """)
    c("one pass = one c-stage; s[54:55] = this tile's stage order (4 bits each), s30 = pass, s33 = ring slot offset")
    a("""
    L_adv:
    s_and_b32 s31, s54, 15
    s_lshl_b32 s32, s31, 17
    s_lshl_b32 s31, s31, 7
    """)
    X, W = "s[4:7]", "s[8:11]"
    xp = [("s50", f"buffer_load_dwordx4 v{5 + (n & 1)}, {X}, s31 offen offset:{n*1024} lds") for n in range(4)]
    wa = [("s51", f"buffer_load_dwordx4 v7, {W}, s{[32,34,35][t]} offen offset:{t*1024} lds") for t in range(3)]
    wb = [("s52", f"buffer_load_dwordx4 v8, {W}, s{[32,34,35][t]} offen offset:{t*1024} lds") for t in range(3)]
    pieces = wa + xp + wb
    rec = "s_sub_u32 s60, s56, s58\ns_min_u32 s60, s60, 0xfff\ns_lshl_b32 s60, s60, 20\ns_sub_u32 s61, s56, s92\ns_or_b32 s60, s60, s61\n"
    def bar(n, cond):
        c("previous stage landed (wave 0 has one more load in flight: the halo) -> publish it")
        a(f"""
        {cond}
        s_cbranch_scc0 L_nb{n}
        s_waitcnt vmcnt({n+1})
        s_cbranch_vccnz L_b{n}
        s_waitcnt vmcnt({n})
        L_b{n}:
        """)
        if P: a("s_waitcnt lgkmcnt(0)\n" + rec + "s_mov_b32 s61, m0\ns_mov_b32 m0, s30\ns_nop 0\ns_movreld_b32 s62, s60\ns_mov_b32 m0, s61\ns_memtime s[58:59]")
        a("s_barrier")
        if P: a("s_memtime s[56:57]")
        a(f"L_nb{n}:")
    cur = None
    extra = [f"s_add_u32 s34, s32, {0x200000-1024}", f"s_add_u32 s35, s32, {0x400000-2048}", "s_lshr_b64 s[54:55], s[54:55], 4"]
    for n in range(11):
        if n == k0 and k0 == k: bar(n, "s_cmp_ge_u32 s30, 1")
        elif n == k0: bar(n, "s_cmp_eq_u32 s30, 1")
        elif n == k: bar(n, "s_cmp_ge_u32 s30, 2")
        if n == 10: break
        if n == 1:
            a(f"""
            s_cbranch_vccz L_nh
            s_add_u32 m0, s33, 16384
            s_mov_b64 exec, 0xffff
            buffer_load_dwordx4 v9, {X}, s31 offen lds
            s_mov_b64 exec, -1
            L_nh:
            """)
            cur = None
        m, ins = pieces[n]
        if m != cur:
            a(f"s_add_u32 m0, s33, {m}")
            a(extra.pop(0) if extra else "s_nop 0")
            cur = m
        a(ins)
    assert not extra
    a(f"""
    s_add_u32 s33, s33, {SLOT}
    s_cmp_ge_u32 s33, {SLOT*NS}
    s_cselect_b32 s33, 0, s33
    s_add_u32 s30, s30, 1
    s_cmp_lg_u32 s30, 1
    s_cbranch_scc1 L_nt
    """)
    c("once, while the first stage is in flight: stage order of this tile class")
    packs = [sum(s << (4 * i) for i, s in enumerate(t[1:])) for t in T]
    for dst_, vals in (("s54", [p & 0xffffffff for p in packs]), ("s55", [p >> 32 for p in packs])):
        a(f"s_mov_b32 {dst_}, {vals[0]:#x}")
        for i in range(1, 4): a(f"s_cmp_ge_u32 s29, {i}\ns_cselect_b32 {dst_}, {vals[i]:#x}, {dst_}")
    a(f"v_and_b32 v16, 63, v0\nv_lshlrev_b32 v17, 2, v16\nv_add_u32 v17, {PARM}, v17")
    a("@EPI_ADDR@")
    a("L_nt:\ns_cmp_lt_u32 s30, 16\ns_cbranch_scc1 L_adv")
    c("---- BN parameters of this tile's 64 columns (L2 hits by now), behind the last stage")
    a("""
    v_lshl_add_u32 v10, v16, 1, s24
    global_load_ushort v12, v10, s[36:37]
    global_load_ushort v13, v10, s[38:39]
    global_load_ushort v14, v10, s[40:41]
    global_load_ushort v15, v10, s[42:43]
    s_waitcnt vmcnt(4)
    """)
    if P: a("s_waitcnt lgkmcnt(0)\n" + rec + "s_mov_b32 s78, s60\ns_memtime s[58:59]")
    a("s_barrier")
    if P: a("s_memtime s[56:57]\ns_waitcnt lgkmcnt(0)\n" + rec + "s_mov_b32 s79, s60")
    if stamps == "E": a("s_memtime s[64:65]")
    ER, ER1, PA, O0, FA, FV = 208, 210, 212, 213, 214, 215
    def epi_addr():
        a(f"""
        v_lshlrev_b32 v4, 1, v3
        v_xor_b32 v4, v4, v2
        s_and_b32 s26, s19, 0xc0
        s_lshl_b32 s26, s26, 5
        s_add_u32 s26, s26, {PLANE}
        v_lshl_add_u32 v4, v4, 4, s26
        v_lshl_add_u32 v{ER}, v2, 8, v4
        v_xor_b32 v{ER+1}, 16, v{ER}
        v_add_u32 v{ER1}, {PLANE1-PLANE}, v{ER}
        v_add_u32 v{ER1+1}, {PLANE1-PLANE}, v{ER+1}
        v_lshlrev_b32 v4, 5, v3
        v_add_u32 v{PA}, {PARM}, v4
        v_and_b32 v4, 3, v2
        v_lshrrev_b32 v1, 2, v2
        v_lshl_add_u32 v1, v4, 1, v1
        s_bitcmp1_b32 s19, 6
        s_cselect_b32 s27, 9, 0
        v_xor_b32 v1, s27, v1
        s_and_b32 s26, s19, 0x80
        s_lshl_b32 s26, s26, 4
        s_add_u32 s26, s26, s23
        s_add_u32 s26, s26, s24
        v_lshl_add_u32 v4, v3, 4, s26
        v_lshl_add_u32 v{O0}, v1, 14, v4
        s_mov_b32 s14, 0x400000
        s_mov_b32 s15, 0x20000
        s_mov_b32 s26, 0xbfb8aa3b
        s_movk_i32 s27, 0x1000
        s_movk_i32 s28, 0x2000
        s_movk_i32 s29, 0x3000
        """)
    PS, PT = 64, 72
    prd = [f"ds_read_b128 v[{PS}:{PS+3}], v{PA}", f"ds_read_b128 v[{PT}:{PT+3}], v{PA} offset:256", f"ds_read_b128 v[{PS+4}:{PS+7}], v{PA} offset:16", f"ds_read_b128 v[{PT+4}:{PT+7}], v{PA} offset:272"]
    def rd(g, y):
        return [f"ds_read_b128 v[{y+8*pl+4*e}:{y+8*pl+4*e+3}], v{(ER1 if pl else ER)+e} offset:{g*8192}" for e in range(2) for pl in range(2)]
    def row(g, y, z, o):
        p = y + 8
        pr = lambda r: f"v[{r}:{r+1}]"
        A = [(f"v_pk_add_f32 {pr(y+2*n)}, {pr(y+2*n)}, {pr(p+2*n)}", [f"v_add_f32 v{y+m}, v{y+m}, v{p+m}" for m in (2*n, 2*n+1)]) for n in range(4)]
        B = [(f"v_pk_fma_f32 {pr(y+2*n)}, {pr(y+2*n)}, {pr(PS+2*n)}, {pr(PT+2*n)}", [f"v_fma_f32 v{y+m}, v{y+m}, v{PS+m}, v{PT+m}" for m in (2*n, 2*n+1)]) for n in range(4)]
        C = [(f"v_pk_fma_f32 {pr(z+2*n)}, {pr(z+2*n)}, s[26:27], s[26:27] op_sel_hi:[1,0,0]", [f"v_fma_f32 v{z+m}, v{z+m}, s26, s26" for m in (2*n, 2*n+1)]) for n in range(4)]
        M = [(f"v_pk_mul_f32 {pr(y+2*n)}, {pr(y+2*n)}, {pr(z+2*n)}", [f"v_mul_f32 v{y+m}, v{y+m}, v{z+m}" for m in (2*n, 2*n+1)]) for n in range(4)]
        E_ = [f"v_exp_f32 v{z+n}, v{y+n}" for n in range(8)]
        Rr = [f"v_rcp_f32 v{z+n}, v{z+n}" for n in range(8)]
        V = [f"v_cvt_pk_bf16_f32 v{o+n}, v{y+2*n}, v{y+2*n+1}" for n in range(4)]
        S = f"buffer_store_dwordx4 v[{o}:{o+3}], v{O0}, s[12:15], {['0', 's27', 's28', 's29'][g]} offen {nto if ntm >> g & 1 else nto.replace(' nt', '')}"
        return [A[0], A[1], B[0], A[2], B[1], E_[0], A[3], E_[1], B[2], E_[2], B[3], E_[3], C[0], E_[4], E_[5], C[1], E_[6], E_[7], C[2], Rr[0], Rr[1], C[3], Rr[2], Rr[3], M[0], Rr[4], Rr[5], M[1], Rr[6], V[0], Rr[7], M[2], V[1], M[3], V[2], V[3], S]
    packed = lambda L_: [t[0] if isinstance(t, tuple) else t for t in L_]
    c("scale' = -log2(e) * g / sqrt(var + eps), shift' = -log2(e) * (b - mean * g / sqrt(var + eps))")
    a(f"""
    s_waitcnt vmcnt(0)
    v_lshlrev_b32 v13, 16, v13
    v_add_f32 v13, 0x3727c5ac, v13
    v_rsq_f32 v13, v13
    v_lshlrev_b32 v12, 16, v12
    v_lshlrev_b32 v14, 16, v14
    v_lshlrev_b32 v15, 16, v15
    v_mul_f32 v13, v13, v14
    v_fma_f32 v15, -v12, v13, v15
    v_mul_f32 v13, s26, v13
    v_mul_f32 v15, s26, v15
    ds_write_b32 v17, v13
    ds_write_b32 v17, v15 offset:256
    """)
    E = stamps == "E"
    a("s_waitcnt lgkmcnt(0)\ns_barrier")
    for t in prd: a(t)
    if lprio: a(f"s_setprio {lprio}")
    c("row group 0 published (finished by the MFMA waves), then groups 1 and 2 (finished here)")
    a("s_barrier")
    if E: a("s_memtime s[66:67]")
    a("s_barrier")
    if E: a("s_memtime s[56:57]")
    for t in rd(1, 80) + rd(2, 96): a(t)
    if lprio: a("s_setprio 0")
    a("s_waitcnt lgkmcnt(0)")
    if E: a("s_memtime s[58:59]")
    for t in packed(row(1, 80, 112, 128)): a(t)
    if E: a("s_memtime s[60:61]")
    for t in packed(row(2, 96, 120, 132)): a(t)
    if E: a("s_memtime s[62:63]")
    a("s_branch L_fin" if stamps else "L_end:\ns_endpgm")
    R = 8
    ACC = lambda j, u: (j * 2 + u) * 4
    XF = lambda buf, j: 64 + buf * 64 + (j + 1) * 4
    WF = lambda buf, kk, u: 64 + buf * 64 + 40 + (kk * 2 + u) * 4
    AX = lambda cls: 192 + cls
    AW = lambda u: 195 + u
    EW = lambda u: 197 + u
    ADDR = list(range(192, 197))
    AL, CF, CV = 199, 204, 205
    c("(unreachable) puts the main loop head on a 32-byte boundary")
    a(f".fill (((32 - ((. - {KNAME} + L_cloop - L_cons) & 31)) & 31) / 4), 4, 0xbf810000")
    a("L_cons:")
    c("---- waves 4-7: wave (kh, nh) accumulates 128 rows x 32 columns over c-half kh of every stage")
    c("touch the BN parameter lines so that the epilogue's loads hit L2")
    a("s_waitcnt lgkmcnt(0)")
    for r in (36, 38, 40, 42):
        a(f"s_load_dword s44, s[{r}:{r+1}], s24\ns_load_dword s44, s[{r}:{r+1}], s24 offset:64")
    if prio: a(f"s_setprio {prio}")
    c("lane (i, G): tile j holds row 8*pi(i)+j; x fragment f = rows 8*pi+f (f = -1..8) serves tap k of tile j = f-k+1")
    a(f"""
    v_and_b32 v10, 15, v0
    v_bfe_u32 v11, v0, 4, 2
    v_lshrrev_b32 v1, 2, v10
    v_lshrrev_b32 v2, 3, v10
    v_xor_b32 v1, v1, v2
    v_and_b32 v1, 1, v1
    v_and_b32 v2, 3, v10
    v_lshl_add_u32 v1, v2, 1, v1
    v_and_or_b32 v1, v10, 8, v1
    v_bfe_u32 v12, v0, 7, 1
    v_bfe_u32 v13, v0, 6, 1
    v_lshl_add_u32 v2, v12, 2, v11
    v_lshrrev_b32 v4, 1, v1
    v_xor_b32 v4, v4, v2
    v_lshlrev_b32 v4, 4, v4
    v_lshl_add_u32 v{AX(1)}, v1, 7, v4
    v_add_u32 v3, -1, v1
    v_bfe_u32 v4, v3, 1, 3
    v_xor_b32 v4, v4, v2
    v_lshlrev_b32 v4, 4, v4
    v_ashrrev_i32 v5, 31, v3
    v_and_b32 v5, 18, v5
    v_add_u32 v3, 0x70, v3
    v_add_u32 v3, v3, v5
    v_lshl_add_u32 v{AX(0)}, v3, 7, v4
    v_add_u32 v3, 1, v1
    v_bfe_u32 v4, v3, 1, 3
    v_xor_b32 v4, v4, v2
    v_lshlrev_b32 v4, 4, v4
    v_and_b32 v5, 16, v3
    v_and_b32 v3, 15, v3
    v_lshl_add_u32 v3, v5, 3, v3
    v_lshl_add_u32 v{AX(2)}, v3, 7, v4
    v_mul_u32_u24 v2, 3072, v2
    v_bfe_u32 v4, v0, 2, 2
    v_lshl_add_u32 v2, v4, 7, v2
    v_and_b32 v5, 3, v0
    v_lshl_add_u32 v2, v5, 3, v2
    v_and_b32 v3, 1, v11
    v_xor_b32 v3, v3, v13
    v_lshrrev_b32 v4, 1, v4
    v_lshl_add_u32 v3, v3, 1, v4
    v_lshl_add_u32 v2, v3, 5, v2
    v_add_u32 v{AW(0)}, {WOFF}, v2
    v_xor_b32 v{AW(1)}, 32, v{AW(0)}
    v_lshl_add_u32 v2, v13, 3, v11
    v_and_b32 v3, 7, v10
    v_xor_b32 v2, v2, v3
    v_lshlrev_b32 v2, 4, v2
    v_lshl_add_u32 v2, v10, 8, v2
    v_mul_u32_u24 v3, {PLANE1-PLANE}, v12
    v_add_u32 v2, v2, v3
    v_add_u32 v{EW(0)}, {PLANE}, v2
    v_xor_b32 v{EW(1)}, 64, v{EW(0)}
    v_lshlrev_b32 v2, 2, v0
    v_add_u32 v{CF}, {FLAG-1024}, v2
    v_mov_b32 v{CV}, 1
    v_and_b32 v4, 3, v0
    v_mul_u32_u24 v4, 0x104, v4
    v_add_u32 v{FA}, {FLAG}, v4
    v_bfe_u32 v2, v0, 3, 3
    v_and_b32 v3, 7, v0
    """)
    n0 = len(a.l)
    epi_addr()
    i_ = [n_ for n_, l in enumerate(a.l) if "@EPI_ADDR@" in l][0]
    a.l[i_] = "\n".join(a.l[n0:])
    for n_, r in enumerate(ADDR): a(f"v_mov_b32 v{AL+n_}, v{r}")
    for r in range(0, 64, 2): a(f"v_mov_b64 v[{r}:{r+1}], 0")
    a(f"ds_write_b32 v{CF}, v0\ns_mov_b32 s30, 0\ns_mov_b32 s33, 0\ns_mov_b32 s35, {SLOT}\ns_waitcnt lgkmcnt(0)")
    tiles = [(j, 0) for j in range(4)] + [(j, 1) for j in range(4)] + [(j, 1) for j in range(4, 8)] + [(j, 0) for j in range(4, 8)]
    def chain(seq):
        out = []
        for n_, (b, j, u) in enumerate(seq): out += [(b, kk, u, j) for kk in ((2, 1, 0) if n_ & 1 else (0, 1, 2))]
        return out
    def mf(b, kk, u, j):
        return f"v_mfma_f32_16x16x32_bf16 v[{ACC(j,u)}:{ACC(j,u)+3}], v[{WF(b,kk,u)}:{WF(b,kk,u)+3}], v[{XF(b,j+kk-1)}:{XF(b,j+kk-1)+3}], v[{ACC(j,u)}:{ACC(j,u)+3}]"
    def reads(buf):
        Lr = []; seen = set()
        for n_, (_, kk, u, j) in enumerate(chain([(buf, j, u) for j, u in tiles])):
            if ("w", kk, u) not in seen:
                seen.add(("w", kk, u)); r = WF(buf, kk, u)
                Lr += [(f"ds_read_b64_tr_b16 v[{r+2*e}:{r+2*e+1}], v{AW(u)} offset:{kk*1024 + e*512}", n_) for e in range(2)]
            f = j + kk - 1
            if ("x", f) not in seen:
                seen.add(("x", f)); r = XF(buf, f)
                cls = 0 if f == -1 else (2 if f == R else 1)
                Lr.append((f"ds_read_b128 v[{r}:{r+3}], v{AX(cls)} offset:{f*2048 if cls == 1 else 0}", n_))
        return Lr
    upd = ["s_add_u32 s33, s33, 1", "s_cmp_eq_u32 s33, 3", f"s_cselect_b32 s34, {(-2*SLOT) & 0xffffffff:#x}, s35", "s_cselect_b32 s33, 0, s33"] + [f"v_add_u32 v{r}, s34, v{r}" for r in ADDR]
    NE = min(22, 45 - bpos)
    WAITS = [-2, 2, 10, 23]
    need = [n_ for _, n_ in reads(0)]
    covered = lambda wi: 22 if wi == len(WAITS) - 1 else sum(1 for n_ in need if n_ <= WAITS[wi + 1])
    def step(buf):
        late = [t for t, _ in reads(buf)[NE:]]
        early = [t for t, _ in reads(buf ^ 1)[:NE]]
        misc = list(upd) + (["s_add_u32 s30, s30, 1", "s_cmp_lt_u32 s30, 7"] if buf else [])
        nr = NE
        for g, m in enumerate(chain([(buf, j, u) for j, u in tiles])):
            a(mf(*m))
            if g in WAITS:
                assert nr >= covered(WAITS.index(g))
                a(f"s_waitcnt lgkmcnt({nr - covered(WAITS.index(g))})")
            elif late: a(late.pop(0)); nr += 1
            elif g < bpos:
                if misc: a(misc.pop(0))
            elif g == bpos:
                assert not misc and g > WAITS[-1]
                a("s_barrier")
            elif early: a(early.pop(0))
            elif g == 46: a(f"s_waitcnt lgkmcnt({NE - covered(0)})")
            elif g == 47 and buf: a("s_cbranch_scc1 L_cloop")
    a("s_barrier")
    if stamps: a("s_memtime s[80:81]\ns_memrealtime s[64:65]\ns_waitcnt lgkmcnt(0)")
    for t, _ in reads(0)[:NE]: a(t)
    a(f"s_waitcnt lgkmcnt({NE - covered(0)})")
    c("main loop: two stages per pass; the barrier publishes the next stage and frees the slot just read")
    a("L_cloop:")
    step(0)
    step(1)
    c("last two stages merged so that the row groups finish one after the other; sums go to LDS as they finish")
    seq = [(0, j, u) for j, u in tiles[:n1]]
    for g in range(4):
        u0 = g & 1
        for j, u in ((2*g, u0), (2*g+1, u0), (2*g+1, u0 ^ 1), (2*g, u0 ^ 1)):
            if (j, u) not in tiles[:n1]: seq.append((0, j, u))
            seq.append((1, j, u))
    fm = chain(seq)
    operands = lambda b, kk, u, j: {XF(b, j + kk - 1), WF(b, kk, u), WF(b, kk, u) + 2}
    dst = lambda text: int(text.split("v[")[1].split(":")[0])
    first_use = {}
    for g, m in enumerate(fm):
        for r in operands(*m): first_use.setdefault(r, g)
    r15 = [t for t, _ in reads(1)]
    for n_, r in enumerate(ADDR): r15 = [t.replace(f", v{r} ", f", v{AL+n_} ") for t in r15]
    pend = sorted([(first_use[dst(t)], 0, t) for t, _ in reads(0)[NE:]] + [(first_use[dst(t)], 1, t) for t in r15], key=lambda e: e[0])
    ops = [(dst(t), -2 - NE + n_) for n_, (t, _) in enumerate(reads(0)[:NE])]
    ncov = covered(0)
    bgap = 3 * n1 - bl
    wq = [((j, u), f"ds_write_b128 v{EW(u)}, v[{ACC(j,u)}:{ACC(j,u)+3}] offset:{j*4096}") for b, j, u in seq if b == 1]
    last_use = {}
    for g, m in enumerate(fm):
        for r in operands(*m): last_use[r] = g
    pfree = max(last_use[XF(0, f)] for f in (-1, 0, 1, 2)) + 1
    assert PS == XF(0, -1)
    Z0, OUT0 = XF(1, -1), 216
    zfree = max(last_use[XF(1, f)] for f in (-1, 0)) + 1
    ppend = list(prd); gpend = rd(0, 0); ep_done = False
    vq = []
    for t in row(0, 0, Z0, OUT0): vq.append(t)
    v_ok = False; g_last = None
    ninst = 0; done_inst = {}
    bar_done = False; nw = 0; lastw = -9
    ev = []
    e_done = 0
    for g, m in enumerate(fm):
        a(mf(*m)); ninst += 1
        if m[0] == 1 and g % 3 == 2: done_inst[(m[3], m[2])] = ninst
        nxt = operands(*fm[g + 1]) if g + 1 < len(fm) else set()
        unc = [n_ for n_, (r, _) in enumerate(ops) if n_ >= ncov and r in nxt]
        assert all(r in [o[0] for o in ops] for r in nxt), ("operand never read", g)
        ready = [e for e in pend if e[1] == 0 or bar_done]
        wrote = False
        if unc:
            cc = max(unc) + 1
            while cc < len(ops) and ops[cc][1] <= g - LAM: cc += 1
            if ops[max(unc)][1] > g - LAM: print("note: short read distance at gap", g, g - ops[max(unc)][1], file=sys.stderr)
            a(f"s_waitcnt lgkmcnt({min(15, len(ops) - cc)})"); ncov = cc
        elif wfirst and wq and wq[0][0] in done_inst and ninst - done_inst[wq[0][0]] >= 8 and g - lastw >= wsp:
            a(wq.pop(0)[1]); ops.append((None, g)); nw += 1; lastw = g
            if nw in (4, 12): ev.append([len(ops), 0])
        elif ev and ev[0][1] == 1:
            assert ep_done and not ppend
            a("s_barrier"); ev.pop(0); e_done += 1
        elif ev and ops[ev[0][0] - 1][1] <= g - 3 * sd:
            a(f"s_waitcnt lgkmcnt({len(ops) - ev[0][0]})"); ev[0][1] = 1; ncov = max(ncov, ev[0][0])
        elif e_done and gpend:
            assert g >= pfree
            a(gpend.pop(0)); ops.append((None, g)); g_last = len(ops)
        elif wq and wq[0][0] in done_inst and ninst - done_inst[wq[0][0]] >= 8 and g - lastw >= wsp:
            a(wq.pop(0)[1]); ops.append((None, g)); nw += 1; lastw = g
            if nw in (4, 12): ev.append([len(ops), 0])
        elif not bar_done and g >= bgap:
            a("s_barrier"); bar_done = True
        elif bar_done and not ep_done and g >= epg:
            a("s_barrier"); ep_done = True
        elif ready:
            pend.remove(ready[0]); a(ready[0][2]); ops.append((dst(ready[0][2]), g))
        elif ppend and ep_done and g >= pfree:
            a(ppend.pop(0)); ops.append((None, g))
        elif not v_ok and not gpend and not ppend and ops[g_last - 1][1] <= g - LAM + 1:
            assert g >= zfree
            a(f"s_waitcnt lgkmcnt({len(ops) - g_last})"); ncov = max(ncov, g_last); v_ok = True
        elif v_ok and len(vq) > 1 and vper:
            t = vq.pop(0)
            if isinstance(t, tuple):
                a(t[1][0])
                if vper == 2: a(t[1][1]); ninst += 1
                else: vq.insert(0, t[1][1])
            else:
                a(t)
                if vper == 2 and "cvt" in t and "cvt" in str(vq[0]): a(vq.pop(0)); ninst += 1
        elif nopf and wq and wq[0][0] in done_inst and nw in (2, 3):
            a("s_nop 1"); ninst += 1
        else:
            ninst -= 1
        ninst += 1
    assert not pend and bar_done and e_done == 2 and v_ok
    print("left of group 0 after the last MFMA:", len(vq), file=sys.stderr)
    if stamps: a("s_memtime s[82:83]\ns_memrealtime s[66:67]")
    rest = packed(vq)
    for key, t in wq:
        while 8 - (ninst - done_inst[key]) > 0:
            if len(rest) > 1: a(rest.pop(0)); ninst += 1
            else:
                gap = 8 - (ninst - done_inst[key]); a(f"s_nop {gap-1}"); ninst += gap
        a(t); ninst += 1
    c("row group 3: handed over through the waves' progress words (read ahead of the data, checked before use)")
    a(f"ds_write_b32 v{CF}, v{CV}")
    for t in rest: a(t)
    if cp2 is not None: a(f"s_setprio {cp2}")
    a(f"L_retry:\nds_read_b32 v{FV}, v{FA}")
    for t in rd(3, 80): a(t)
    a(f"s_waitcnt lgkmcnt(0)\nv_cmp_ne_u32 vcc, 1, v{FV}\ns_cbranch_vccnz L_retry")
    for t in packed(row(3, 80, 112, 120)): a(t)
    if not stamps: a("s_endpgm")
    else:
        a("L_fin:\ns_barrier")
        if P:
            a("s_waitcnt vmcnt(0)\ns_cmp_lg_u32 s19, 64\ns_cbranch_scc1 L_end\nv_mov_b32 v30, 0")
            for r in range(2, 18): a(f"v_writelane_b32 v30, s{62+r}, {r}")
            a("""
            v_lshrrev_b32 v31, 20, v30
            v_and_b32 v30, 0xfffff, v30
            v_sub_u32 v31, v30, v31
            v_and_b32 v32, 63, v0
            s_lshl_b32 s26, s2, 8
            s_add_u32 s26, s26, 0x10000
            v_lshl_add_u32 v32, v32, 2, s26
            s_mov_b64 exec, 0xffffffff
            global_store_dword v32, v30, s[88:89]
            global_store_dword v32, v31, s[88:89] offset:128
            s_mov_b64 exec, -1
            """)
            stamp_end(a, extra=[], vbase=176)
        elif E:
            a("s_memtime s[84:85]\ns_waitcnt vmcnt(0)\ns_barrier\ns_cmpk_lg_u32 s19, 0\ns_cbranch_scc1 L_end\ns_waitcnt lgkmcnt(0)")
            for r in (64, 66, 56, 58, 60, 62): a(f"s_sub_u32 s{r}, s84, s{r}")
            stamp_end(a, extra=["s64", "s66", "s56", "s58", "s60", "s62"], vbase=176)
        else:
            a("s_memtime s[84:85]\ns_waitcnt vmcnt(0)\ns_barrier\ns_cmpk_lg_u32 s19, 0x100\ns_cbranch_scc1 L_end\ns_waitcnt lgkmcnt(0)")
            a("s_sub_u32 s80, s80, s92\ns_sub_u32 s82, s82, s92\ns_sub_u32 s84, s84, s92\ns_sub_u32 s66, s66, s64\ns_sub_u32 s64, s64, s90")
            stamp_end(a, extra=["s80", "s82", "s84", "s64", "s66"], vbase=176)
        a("L_end:\ns_endpgm")
    c("(unreachable) room for the instruction prefetcher's run-ahead")
    a(".fill 288, 4, 0xbf810000\nL_last:")
    ref = "standalone__batchnorm__prompt.s.ref"
    hdr = open(ref).read().split("; Override")[0] if os.path.exists(ref) else ""
    txt = "\n".join(l for l in a.text().split("\n") if l.strip()) + "\n"
    return wrap(txt, 256, 512, LDS, vgpr=224, accum=224, header=hdr)

if __name__ == "__main__":
    import ast
    names = []
    for spec in sys.argv[1:]:
        name, _, kw = spec.partition(":")
        d = {}
        for item in filter(None, kw.split(",")):
            kk, v = item.split("=")
            try: v = ast.literal_eval(v.replace("_", ","))
            except Exception: v = v.replace("+", " ")
            d[kk] = v
        open(name + ".s", "w").write(gen(**d))
        names.append(name + ".s")
    print(" ".join(names))
```

```python
import sys, os
from asmlib import *

SLOT = 41216
WOFF = 130 * 128
NS = 3
PLANE = SLOT
PARM = NS * SLOT
PLANE1 = PARM + 512
FLAG = PLANE1 + 32768
LDS = FLAG + 1024

def build(first, touch):
    when = {st: 0 for st in first}
    for slot, q, st in touch: when[st] = slot
    assert sorted(when) == list(range(16))
    T = []
    for q in range(4):
        mine = {slot: st for slot, qq, st in touch if qq == q}
        mine[0] = first[q]
        order = []
        for slot in range(16):
            if slot in mine: pick = mine[slot]
            else: pick = min((st for st in range(16) if st not in order and st not in mine.values() and when[st] < slot), key=lambda st: (when[st], st))
            order.append(pick)
        assert sorted(order) == list(range(16))
        T.append(order)
    return T

def gen(stamps=False, nto="sc0 sc1 nt", k0=5, k=8, prio=3, bpos=29, sd=1, n1=10, LAM=7, bl=19, ahead=2,
        lprio=0, cpf=1, vper=2, nopf=1, cp2=0, wsp=3, epg=37, wfirst=0, ntm=15, perm=None, aodd=None, we=0, wsr=None, wsp_=''):
    a = Asm()
    c = lambda t: a.l.append("    ; " + t)
    P = stamps == "P"
    T = build([0, 1, 2, 3], [(s - ahead, s & 3, s) for s in range(4, 16)])
    if aodd is not None: T = T + build([0, 1, 2, 3], [(s - aodd, s & 3, s) for s in range(4, 16)])
    if perm: T = [[int(perm[1:][st], 16) for st in t] for t in T]
    f0 = T[0][0]
    assert [t[0] for t in T[:4]] == [f0 + q for q in range(4)]
    if stamps: stamp_begin(a); a("s_load_dwordx2 s[88:89], s[0:1], 64")
    c("---- entry: pointers, tile coordinates.  XCD (wg & 7) owns 8 x 4 tiles of 128 rows x 64 columns")
    a("""
    s_load_dwordx2 s[4:5], s[0:1], 0
    s_load_dwordx2 s[8:9], s[0:1], 8
    s_load_dwordx8 s[36:43], s[0:1], 16
    s_load_dwordx2 s[12:13], s[0:1], 48
    v_readfirstlane_b32 s19, v0
    s_cmpk_ge_u32 s2, 0x100
    s_cbranch_scc1 L_end
    s_bfe_u32 s21, s2, 0x30003
    s_and_b32 s22, s2, 4
    s_lshl1_add_u32 s23, s22, s21
    s_and_b32 s22, s2, 3
    s_lshr_b32 s25, s2, 6
    s_lshl2_add_u32 s24, s22, s25
    s_lshl_b32 s23, s23, 18
    s_lshl_b32 s24, s24, 7
    s_cmpk_ge_u32 s19, 0x100
    """)
    c("s23 = row tile * 128 * 2048 B, s24 = column tile * 128 B, s19 = first thread id of the wave")
    if cpf:
        a("s_cbranch_scc0 L_load")
        c("waves 4-7 (MFMA waves): read one 128-B line of this kernel's code each, so that it is in L2 before it is fetched")
        a("""
        s_getpc_b64 s[16:17]
        L_pc:
        s_lshl_b32 s26, s2, 5
        s_and_b32 s26, s26, 0xf00
        s_add_u32 s26, s26, s19
        s_lshl_b32 s26, s26, 1
        s_min_u32 s26, s26, L_last-L_pc-128
        s_load_dword s44, s[16:17], s26
        s_load_dword s44, s[16:17], s26 offset:64
        s_waitcnt lgkmcnt(0)
        s_branch L_cons
        L_load:
        """)
    else:
        a("s_cbranch_scc1 L_cons")
    c("---- waves 0-3: LDS-DMA loaders.  v5/v6: x pieces, v7/v8: W pieces (own / partner half), v9: halo rows")
    a(f"""
    v_bfe_u32 v2, v0, 3, 3
    v_and_b32 v3, 7, v0
    v_bfe_u32 v4, v0, 4, 2
    v_xor_b32 v5, v3, v4
    s_lshl_b32 s50, s19, 6
    s_add_u32 s26, s50, s23
    v_lshl_add_u32 v5, v5, 4, s26
    v_lshl_add_u32 v5, v2, 14, v5
    v_xor_b32 v6, 64, v5
    v_add_u32 v6, {131072-1024}, v6
    v_and_b32 v4, {6 if we else 2}, v2
    v_xor_b32 v7, v4, v3
    s_lshl_b32 s26, s19, 9
    s_add_u32 s26, s26, s24
    v_lshl_add_u32 v7, v7, 4, s26
    v_lshl_add_u32 v7, v2, 11, v7
    {"v_and_b32 v4, 4, v2" if we else ""}
    {"v_lshl_add_u32 v7, v4, 11, v7" if we else ""}
    s_mul_i32 s51, s19, 96
    s_addk_i32 s51, {WOFF}
    s_bitcmp1_b32 s2, 5
    s_cselect_b32 s26, {0x2000 if we else 0x4040}, 0
    s_cselect_b32 s27, 3072, 0
    v_xor_b32 v7, s26, v7
    s_sub_u32 s52, s51, s27
    s_add_u32 s51, s51, s27
    s_addk_i32 s52, 3072
    v_xor_b32 v8, {0x2000 if we else 0x4040}, v7
    v_mul_u32_u24 v9, 7, v2
    v_xor_b32 v9, v9, v3
    s_add_u32 s26, s23, 0x40000
    v_lshl_add_u32 v9, v9, 4, s26
    s_mov_b32 s26, {(-0x40800) & 0xffffffff}
    v_mad_i32_i24 v9, v2, s26, v9
    s_add_u32 s29, s21, s25
    s_and_b32 s29, s29, 3
    s_add_u32 s54, s29, {f0}
    s_mov_b32 s6, 0x400000
    s_mov_b32 s7, 0x20000
    s_mov_b32 s10, 0x600000
    s_mov_b32 s11, 0x20000
    s_cmp_eq_u32 s19, 0
    s_cselect_b64 vcc, -1, 0
    s_mov_b32 s30, 0
    s_mov_b32 s33, 0
    v_mov_b32 v213, 0
    s_mov_b64 s[14:15], s[6:7]
    s_waitcnt lgkmcnt(0)
    """)
    c("one pass = one c-stage; s[54:55] = this tile's stage order (4 bits each), s30 = pass, s33 = ring slot offset")
    a("""
    L_adv:
    s_and_b32 s31, s54, 15
    s_lshl_b32 s32, s31, 17
    s_lshl_b32 s31, s31, 7
    """)
    X, W = "s[4:7]", "s[8:11]"
    xp = [("s50", f"buffer_load_dwordx4 v{5 + (n & 1)}, {X}, s31 offen offset:{n*1024} lds") for n in range(4)]
    wa = [("s51", f"buffer_load_dwordx4 v7, {W}, s{[32,34,35][t]} offen offset:{t*1024} lds") for t in range(3)]
    wb = [("s52", f"buffer_load_dwordx4 v8, {W}, s{[32,34,35][t]} offen offset:{t*1024} lds") for t in range(3)]
    pieces = wa + xp + wb
    rec = "s_sub_u32 s60, s56, s58\ns_min_u32 s60, s60, 0xfff\ns_lshl_b32 s60, s60, 20\ns_sub_u32 s61, s56, s92\ns_or_b32 s60, s60, s61\n"
    def bar(n, cond):
        c("previous stage landed (wave 0 has one more load in flight: the halo) -> publish it")
        a(f"""
        {cond}
        s_cbranch_scc0 L_nb{n}
        s_waitcnt vmcnt({n+1})
        s_cbranch_vccnz L_b{n}
        s_waitcnt vmcnt({n})
        L_b{n}:
        """)
        if P: a("s_waitcnt lgkmcnt(0)\n" + rec + "s_mov_b32 s61, m0\ns_mov_b32 m0, s30\ns_nop 0\ns_movreld_b32 s62, s60\ns_mov_b32 m0, s61\ns_memtime s[58:59]")
        a("s_barrier")
        if P: a("s_memtime s[56:57]")
        a(f"L_nb{n}:")
    cur = None
    extra = [f"s_add_u32 s34, s32, {0x200000-1024}", f"s_add_u32 s35, s32, {0x400000-2048}", "s_lshr_b64 s[54:55], s[54:55], 4"]
    for n in range(11):
        if n == k0 and k0 == k: bar(n, "s_cmp_ge_u32 s30, 1")
        elif n == k0: bar(n, "s_cmp_eq_u32 s30, 1")
        elif n == k: bar(n, "s_cmp_ge_u32 s30, 2")
        if n == 10: break
        if n == 1:
            a(f"""
            s_cbranch_vccz L_nh
            s_add_u32 m0, s33, 16384
            s_mov_b64 exec, 0xffff
            buffer_load_dwordx4 v9, {X}, s31 offen lds
            s_mov_b64 exec, -1
            L_nh:
            """)
            cur = None
        m, ins = pieces[n]
        if m != cur:
            a(f"s_add_u32 m0, s33, {m}")
            a(extra.pop(0) if extra else "s_nop 0")
            cur = m
        a(ins)
    assert not extra
    a(f"""
    s_add_u32 s33, s33, {SLOT}
    s_cmp_ge_u32 s33, {SLOT*NS}
    s_cselect_b32 s33, 0, s33
    s_add_u32 s30, s30, 1
    s_cmp_lg_u32 s30, 1
    s_cbranch_scc1 L_nt
    """)
    c("once, while the first stage is in flight: stage order of this tile class")
    packs = [sum(s << (4 * i) for i, s in enumerate(t[1:])) for t in T]
    if aodd is not None: a("s_and_b32 s26, s2, 1\ns_lshl2_add_u32 s29, s26, s29")
    for dst_, vals in (("s54", [p & 0xffffffff for p in packs]), ("s55", [p >> 32 for p in packs])):
        a(f"s_mov_b32 {dst_}, {vals[0]:#x}")
        for i in range(1, len(T)): a(f"s_cmp_ge_u32 s29, {i}\ns_cselect_b32 {dst_}, {vals[i]:#x}, {dst_}")
    a(f"v_and_b32 v16, 63, v0\nv_lshlrev_b32 v17, 2, v16\nv_add_u32 v17, {PARM}, v17")
    a("@EPI_ADDR@")
    a("L_nt:\ns_cmp_lt_u32 s30, 16\ns_cbranch_scc1 L_adv")
    c("---- BN parameters of this tile's 64 columns (L2 hits by now), behind the last stage")
    a("""
    v_lshl_add_u32 v10, v16, 1, s24
    global_load_ushort v12, v10, s[36:37]
    global_load_ushort v13, v10, s[38:39]
    global_load_ushort v14, v10, s[40:41]
    global_load_ushort v15, v10, s[42:43]
    s_waitcnt vmcnt(4)
    """)
    if P: a("s_waitcnt lgkmcnt(0)\n" + rec + "s_mov_b32 s78, s60\ns_memtime s[58:59]")
    a("s_barrier")
    if P: a("s_memtime s[56:57]\ns_waitcnt lgkmcnt(0)\n" + rec + "s_mov_b32 s79, s60")
    if stamps == "E": a("s_memtime s[64:65]")
    ER, ER1, PA, O0, FA, FV = 208, 210, 212, 213, 214, 215
    def epi_addr():
        a(f"""
        v_lshlrev_b32 v4, 1, v3
        v_xor_b32 v4, v4, v2
        s_and_b32 s26, s19, 0xc0
        s_lshl_b32 s26, s26, 5
        s_add_u32 s26, s26, {PLANE}
        v_lshl_add_u32 v4, v4, 4, s26
        v_lshl_add_u32 v{ER}, v2, 8, v4
        v_xor_b32 v{ER+1}, 16, v{ER}
        v_add_u32 v{ER1}, {PLANE1-PLANE}, v{ER}
        v_add_u32 v{ER1+1}, {PLANE1-PLANE}, v{ER+1}
        v_lshlrev_b32 v4, 5, v3
        v_add_u32 v{PA}, {PARM}, v4
        v_and_b32 v4, 3, v2
        v_lshrrev_b32 v1, 2, v2
        v_lshl_add_u32 v1, v4, 1, v1
        s_bitcmp1_b32 s19, 6
        s_cselect_b32 s27, 9, 0
        v_xor_b32 v1, s27, v1
        s_and_b32 s26, s19, 0x80
        s_lshl_b32 s26, s26, 4
        s_add_u32 s26, s26, s23
        s_add_u32 s26, s26, s24
        v_lshl_add_u32 v4, v3, 4, s26
        v_lshl_add_u32 v{O0}, v1, 14, v4
        s_mov_b32 s14, 0x400000
        s_mov_b32 s15, 0x20000
        s_mov_b32 s26, 0xbfb8aa3b
        s_movk_i32 s27, 0x1000
        s_movk_i32 s28, 0x2000
        s_movk_i32 s29, 0x3000
        """)
    PS, PT = 64, 72
    prd = [f"ds_read_b128 v[{PS}:{PS+3}], v{PA}", f"ds_read_b128 v[{PT}:{PT+3}], v{PA} offset:256", f"ds_read_b128 v[{PS+4}:{PS+7}], v{PA} offset:16", f"ds_read_b128 v[{PT+4}:{PT+7}], v{PA} offset:272"]
    def rd(g, y):
        return [f"ds_read_b128 v[{y+8*pl+4*e}:{y+8*pl+4*e+3}], v{(ER1 if pl else ER)+e} offset:{g*8192}" for e in range(2) for pl in range(2)]
    def row(g, y, z, o):
        p = y + 8
        pr = lambda r: f"v[{r}:{r+1}]"
        A = [(f"v_pk_add_f32 {pr(y+2*n)}, {pr(y+2*n)}, {pr(p+2*n)}", [f"v_add_f32 v{y+m}, v{y+m}, v{p+m}" for m in (2*n, 2*n+1)]) for n in range(4)]
        B = [(f"v_pk_fma_f32 {pr(y+2*n)}, {pr(y+2*n)}, {pr(PS+2*n)}, {pr(PT+2*n)}", [f"v_fma_f32 v{y+m}, v{y+m}, v{PS+m}, v{PT+m}" for m in (2*n, 2*n+1)]) for n in range(4)]
        C = [(f"v_pk_fma_f32 {pr(z+2*n)}, {pr(z+2*n)}, s[26:27], s[26:27] op_sel_hi:[1,0,0]", [f"v_fma_f32 v{z+m}, v{z+m}, s26, s26" for m in (2*n, 2*n+1)]) for n in range(4)]
        M = [(f"v_pk_mul_f32 {pr(y+2*n)}, {pr(y+2*n)}, {pr(z+2*n)}", [f"v_mul_f32 v{y+m}, v{y+m}, v{z+m}" for m in (2*n, 2*n+1)]) for n in range(4)]
        E_ = [f"v_exp_f32 v{z+n}, v{y+n}" for n in range(8)]
        Rr = [f"v_rcp_f32 v{z+n}, v{z+n}" for n in range(8)]
        V = [f"v_cvt_pk_bf16_f32 v{o+n}, v{y+2*n}, v{y+2*n+1}" for n in range(4)]
        S = f"buffer_store_dwordx4 v[{o}:{o+3}], v{O0}, s[12:15], {['0', 's27', 's28', 's29'][g]} offen {nto if ntm >> g & 1 else nto.replace(' nt', '')}"
        return [A[0], A[1], B[0], A[2], B[1], E_[0], A[3], E_[1], B[2], E_[2], B[3], E_[3], C[0], E_[4], E_[5], C[1], E_[6], E_[7], C[2], Rr[0], Rr[1], C[3], Rr[2], Rr[3], M[0], Rr[4], Rr[5], M[1], Rr[6], V[0], Rr[7], M[2], V[1], M[3], V[2], V[3], S]
    packed = lambda L_: [t[0] if isinstance(t, tuple) else t for t in L_]
    c("scale' = -log2(e) * g / sqrt(var + eps), shift' = -log2(e) * (b - mean * g / sqrt(var + eps))")
    a(f"""
    s_waitcnt vmcnt(0)
    v_lshlrev_b32 v13, 16, v13
    v_add_f32 v13, 0x3727c5ac, v13
    v_rsq_f32 v13, v13
    v_lshlrev_b32 v12, 16, v12
    v_lshlrev_b32 v14, 16, v14
    v_lshlrev_b32 v15, 16, v15
    v_mul_f32 v13, v13, v14
    v_fma_f32 v15, -v12, v13, v15
    v_mul_f32 v13, s26, v13
    v_mul_f32 v15, s26, v15
    ds_write_b32 v17, v13
    ds_write_b32 v17, v15 offset:256
    """)
    E = stamps == "E"
    a("s_waitcnt lgkmcnt(0)\ns_barrier")
    for t in prd: a(t)
    if lprio: a(f"s_setprio {lprio}")
    c("row group 0 published (finished by the MFMA waves), then groups 1 and 2 (finished here)")
    a("s_barrier")
    if E: a("s_memtime s[66:67]")
    a("s_barrier")
    if E: a("s_memtime s[56:57]")
    for t in rd(1, 80) + rd(2, 96): a(t)
    if lprio: a("s_setprio 0")
    a("s_waitcnt lgkmcnt(0)")
    if E: a("s_memtime s[58:59]")
    for t in packed(row(1, 80, 112, 128)): a(t)
    if E: a("s_memtime s[60:61]")
    for t in packed(row(2, 96, 120, 132)): a(t)
    if E: a("s_memtime s[62:63]")
    if wsr is not None:
        a(f"""
        s_load_dwordx2 s[44:45], s[0:1], 64
        s_mov_b32 s46, 0x10000000
        s_mov_b32 s47, 0x20000
        v_lshlrev_b32 v1, 7, v0
        s_lshl_b32 s48, s2, 17
        s_add_u32 s48, s48, {wsr << 20}
        s_waitcnt lgkmcnt(0)
        """)
        for i in range(4): a(f"buffer_load_dword v2, v1, s[44:47], s48 offen {wsp_}\ns_add_u32 s48, s48, 0x8000")
        a("s_waitcnt vmcnt(0)")
    a("s_branch L_fin" if stamps else "L_end:\ns_endpgm")
    R = 8
    ACC = lambda j, u: (j * 2 + u) * 4
    XF = lambda buf, j: 64 + buf * 64 + (j + 1) * 4
    WF = lambda buf, kk, u: 64 + buf * 64 + 40 + (kk * 2 + u) * 4
    AX = lambda cls: 192 + cls
    AW = lambda u: 195 + u
    EW = lambda u: 197 + u
    ADDR = list(range(192, 197))
    AL, CF, CV = 199, 204, 205
    c("(unreachable) puts the main loop head on a 32-byte boundary")
    a(f".fill (((32 - ((. - {KNAME} + L_cloop - L_cons) & 31)) & 31) / 4), 4, 0xbf810000")
    a("L_cons:")
    c("---- waves 4-7: wave (kh, nh) accumulates 128 rows x 32 columns over c-half kh of every stage")
    c("touch the BN parameter lines so that the epilogue's loads hit L2")
    a("s_waitcnt lgkmcnt(0)")
    for r in (36, 38, 40, 42):
        a(f"s_load_dword s44, s[{r}:{r+1}], s24\ns_load_dword s44, s[{r}:{r+1}], s24 offset:64")
    if prio: a(f"s_setprio {prio}")
    c("lane (i, G): tile j holds row 8*pi(i)+j; x fragment f = rows 8*pi+f (f = -1..8) serves tap k of tile j = f-k+1")
    a(f"""
    v_and_b32 v10, 15, v0
    v_bfe_u32 v11, v0, 4, 2
    v_lshrrev_b32 v1, 2, v10
    v_lshrrev_b32 v2, 3, v10
    v_xor_b32 v1, v1, v2
    v_and_b32 v1, 1, v1
    v_and_b32 v2, 3, v10
    v_lshl_add_u32 v1, v2, 1, v1
    v_and_or_b32 v1, v10, 8, v1
    v_bfe_u32 v12, v0, 7, 1
    v_bfe_u32 v13, v0, 6, 1
    v_lshl_add_u32 v2, v12, 2, v11
    v_lshrrev_b32 v4, 1, v1
    v_xor_b32 v4, v4, v2
    v_lshlrev_b32 v4, 4, v4
    v_lshl_add_u32 v{AX(1)}, v1, 7, v4
    v_add_u32 v3, -1, v1
    v_bfe_u32 v4, v3, 1, 3
    v_xor_b32 v4, v4, v2
    v_lshlrev_b32 v4, 4, v4
    v_ashrrev_i32 v5, 31, v3
    v_and_b32 v5, 18, v5
    v_add_u32 v3, 0x70, v3
    v_add_u32 v3, v3, v5
    v_lshl_add_u32 v{AX(0)}, v3, 7, v4
    v_add_u32 v3, 1, v1
    v_bfe_u32 v4, v3, 1, 3
    v_xor_b32 v4, v4, v2
    v_lshlrev_b32 v4, 4, v4
    v_and_b32 v5, 16, v3
    v_and_b32 v3, 15, v3
    v_lshl_add_u32 v3, v5, 3, v3
    v_lshl_add_u32 v{AX(2)}, v3, 7, v4
    {"v_and_b32 v3, 1, v2" if we else ""}
    {"v_and_b32 v2, 6, v2" if we else ""}
    v_mul_u32_u24 v2, 3072, v2
    {"v_lshl_add_u32 v2, v3, 9, v2" if we else ""}
    v_bfe_u32 v4, v0, 2, 2
    v_lshl_add_u32 v2, v4, 7, v2
    v_and_b32 v5, 3, v0
    v_lshl_add_u32 v2, v5, 3, v2
    v_and_b32 v3, 1, v11
    v_xor_b32 v3, v3, v13
    v_lshrrev_b32 v4, 1, v4
    v_lshl_add_u32 v3, v3, 1, v4
    v_lshl_add_u32 v2, v3, 5, v2
    v_add_u32 v{AW(0)}, {WOFF}, v2
    v_xor_b32 v{AW(1)}, 32, v{AW(0)}
    v_lshl_add_u32 v2, v13, 3, v11
    v_and_b32 v3, 7, v10
    v_xor_b32 v2, v2, v3
    v_lshlrev_b32 v2, 4, v2
    v_lshl_add_u32 v2, v10, 8, v2
    v_mul_u32_u24 v3, {PLANE1-PLANE}, v12
    v_add_u32 v2, v2, v3
    v_add_u32 v{EW(0)}, {PLANE}, v2
    v_xor_b32 v{EW(1)}, 64, v{EW(0)}
    v_lshlrev_b32 v2, 2, v0
    v_add_u32 v{CF}, {FLAG-1024}, v2
    v_mov_b32 v{CV}, 1
    v_and_b32 v4, 3, v0
    v_mul_u32_u24 v4, 0x104, v4
    v_add_u32 v{FA}, {FLAG}, v4
    v_bfe_u32 v2, v0, 3, 3
    v_and_b32 v3, 7, v0
    """)
    n0 = len(a.l)
    epi_addr()
    i_ = [n_ for n_, l in enumerate(a.l) if "@EPI_ADDR@" in l][0]
    a.l[i_] = "\n".join(a.l[n0:])
    for n_, r in enumerate(ADDR): a(f"v_mov_b32 v{AL+n_}, v{r}")
    for r in range(0, 64, 2): a(f"v_mov_b64 v[{r}:{r+1}], 0")
    a(f"ds_write_b32 v{CF}, v0\ns_mov_b32 s30, 0\ns_mov_b32 s33, 0\ns_mov_b32 s35, {SLOT}\ns_waitcnt lgkmcnt(0)")
    tiles = [(j, 0) for j in range(4)] + [(j, 1) for j in range(4)] + [(j, 1) for j in range(4, 8)] + [(j, 0) for j in range(4, 8)]
    def chain(seq):
        out = []
        for n_, (b, j, u) in enumerate(seq): out += [(b, kk, u, j) for kk in ((2, 1, 0) if n_ & 1 else (0, 1, 2))]
        return out
    def mf(b, kk, u, j):
        return f"v_mfma_f32_16x16x32_bf16 v[{ACC(j,u)}:{ACC(j,u)+3}], v[{WF(b,kk,u)}:{WF(b,kk,u)+3}], v[{XF(b,j+kk-1)}:{XF(b,j+kk-1)+3}], v[{ACC(j,u)}:{ACC(j,u)+3}]"
    def reads(buf):
        Lr = []; seen = set()
        for n_, (_, kk, u, j) in enumerate(chain([(buf, j, u) for j, u in tiles])):
            if ("w", kk, u) not in seen:
                seen.add(("w", kk, u)); r = WF(buf, kk, u)
                Lr += [(f"ds_read_b64_tr_b16 v[{r+2*e}:{r+2*e+1}], v{AW(u)} offset:{kk*1024 + e*(3072 if we else 512)}", n_) for e in range(2)]
            f = j + kk - 1
            if ("x", f) not in seen:
                seen.add(("x", f)); r = XF(buf, f)
                cls = 0 if f == -1 else (2 if f == R else 1)
                Lr.append((f"ds_read_b128 v[{r}:{r+3}], v{AX(cls)} offset:{f*2048 if cls == 1 else 0}", n_))
        return Lr
    upd = ["s_add_u32 s33, s33, 1", "s_cmp_eq_u32 s33, 3", f"s_cselect_b32 s34, {(-2*SLOT) & 0xffffffff:#x}, s35", "s_cselect_b32 s33, 0, s33"] + [f"v_add_u32 v{r}, s34, v{r}" for r in ADDR]
    NE = min(22, 45 - bpos)
    WAITS = [-2, 2, 10, 23]
    need = [n_ for _, n_ in reads(0)]
    covered = lambda wi: 22 if wi == len(WAITS) - 1 else sum(1 for n_ in need if n_ <= WAITS[wi + 1])
    def step(buf):
        late = [t for t, _ in reads(buf)[NE:]]
        early = [t for t, _ in reads(buf ^ 1)[:NE]]
        misc = list(upd) + (["s_add_u32 s30, s30, 1", "s_cmp_lt_u32 s30, 7"] if buf else [])
        nr = NE
        for g, m in enumerate(chain([(buf, j, u) for j, u in tiles])):
            a(mf(*m))
            if g in WAITS:
                assert nr >= covered(WAITS.index(g))
                a(f"s_waitcnt lgkmcnt({nr - covered(WAITS.index(g))})")
            elif late: a(late.pop(0)); nr += 1
            elif g < bpos:
                if misc: a(misc.pop(0))
            elif g == bpos:
                assert not misc and g > WAITS[-1]
                a("s_barrier")
            elif early: a(early.pop(0))
            elif g == 46: a(f"s_waitcnt lgkmcnt({NE - covered(0)})")
            elif g == 47 and buf: a("s_cbranch_scc1 L_cloop")
    a("s_barrier")
    if stamps: a("s_memtime s[80:81]\ns_memrealtime s[64:65]\ns_waitcnt lgkmcnt(0)")
    for t, _ in reads(0)[:NE]: a(t)
    a(f"s_waitcnt lgkmcnt({NE - covered(0)})")
    c("main loop: two stages per pass; the barrier publishes the next stage and frees the slot just read")
    a("L_cloop:")
    step(0)
    step(1)
    c("last two stages merged so that the row groups finish one after the other; sums go to LDS as they finish")
    seq = [(0, j, u) for j, u in tiles[:n1]]
    for g in range(4):
        u0 = g & 1
        for j, u in ((2*g, u0), (2*g+1, u0), (2*g+1, u0 ^ 1), (2*g, u0 ^ 1)):
            if (j, u) not in tiles[:n1]: seq.append((0, j, u))
            seq.append((1, j, u))
    fm = chain(seq)
    operands = lambda b, kk, u, j: {XF(b, j + kk - 1), WF(b, kk, u), WF(b, kk, u) + 2}
    dst = lambda text: int(text.split("v[")[1].split(":")[0])
    first_use = {}
    for g, m in enumerate(fm):
        for r in operands(*m): first_use.setdefault(r, g)
    r15 = [t for t, _ in reads(1)]
    for n_, r in enumerate(ADDR): r15 = [t.replace(f", v{r} ", f", v{AL+n_} ") for t in r15]
    pend = sorted([(first_use[dst(t)], 0, t) for t, _ in reads(0)[NE:]] + [(first_use[dst(t)], 1, t) for t in r15], key=lambda e: e[0])
    ops = [(dst(t), -2 - NE + n_) for n_, (t, _) in enumerate(reads(0)[:NE])]
    ncov = covered(0)
    bgap = 3 * n1 - bl
    wq = [((j, u), f"ds_write_b128 v{EW(u)}, v[{ACC(j,u)}:{ACC(j,u)+3}] offset:{j*4096}") for b, j, u in seq if b == 1]
    last_use = {}
    for g, m in enumerate(fm):
        for r in operands(*m): last_use[r] = g
    pfree = max(last_use[XF(0, f)] for f in (-1, 0, 1, 2)) + 1
    assert PS == XF(0, -1)
    Z0, OUT0 = XF(1, -1), 216
    zfree = max(last_use[XF(1, f)] for f in (-1, 0)) + 1
    ppend = list(prd); gpend = rd(0, 0); ep_done = False
    vq = []
    for t in row(0, 0, Z0, OUT0): vq.append(t)
    v_ok = False; g_last = None
    ninst = 0; done_inst = {}
    bar_done = False; nw = 0; lastw = -9
    ev = []
    e_done = 0
    for g, m in enumerate(fm):
        a(mf(*m)); ninst += 1
        if m[0] == 1 and g % 3 == 2: done_inst[(m[3], m[2])] = ninst
        nxt = operands(*fm[g + 1]) if g + 1 < len(fm) else set()
        unc = [n_ for n_, (r, _) in enumerate(ops) if n_ >= ncov and r in nxt]
        assert all(r in [o[0] for o in ops] for r in nxt), ("operand never read", g)
        ready = [e for e in pend if e[1] == 0 or bar_done]
        wrote = False
        if unc:
            cc = max(unc) + 1
            while cc < len(ops) and ops[cc][1] <= g - LAM: cc += 1
            if ops[max(unc)][1] > g - LAM: print("note: short read distance at gap", g, g - ops[max(unc)][1], file=sys.stderr)
            a(f"s_waitcnt lgkmcnt({min(15, len(ops) - cc)})"); ncov = cc
        elif wfirst and wq and wq[0][0] in done_inst and ninst - done_inst[wq[0][0]] >= 8 and g - lastw >= wsp:
            a(wq.pop(0)[1]); ops.append((None, g)); nw += 1; lastw = g
            if nw in (4, 12): ev.append([len(ops), 0])
        elif ev and ev[0][1] == 1:
            assert ep_done and not ppend
            a("s_barrier"); ev.pop(0); e_done += 1
        elif ev and ops[ev[0][0] - 1][1] <= g - 3 * sd:
            a(f"s_waitcnt lgkmcnt({len(ops) - ev[0][0]})"); ev[0][1] = 1; ncov = max(ncov, ev[0][0])
        elif e_done and gpend:
            assert g >= pfree
            a(gpend.pop(0)); ops.append((None, g)); g_last = len(ops)
        elif wq and wq[0][0] in done_inst and ninst - done_inst[wq[0][0]] >= 8 and g - lastw >= wsp:
            a(wq.pop(0)[1]); ops.append((None, g)); nw += 1; lastw = g
            if nw in (4, 12): ev.append([len(ops), 0])
        elif not bar_done and g >= bgap:
            a("s_barrier"); bar_done = True
        elif bar_done and not ep_done and g >= epg:
            a("s_barrier"); ep_done = True
        elif ready:
            pend.remove(ready[0]); a(ready[0][2]); ops.append((dst(ready[0][2]), g))
        elif ppend and ep_done and g >= pfree:
            a(ppend.pop(0)); ops.append((None, g))
        elif not v_ok and not gpend and not ppend and ops[g_last - 1][1] <= g - LAM + 1:
            assert g >= zfree
            a(f"s_waitcnt lgkmcnt({len(ops) - g_last})"); ncov = max(ncov, g_last); v_ok = True
        elif v_ok and len(vq) > 1 and vper:
            t = vq.pop(0)
            if isinstance(t, tuple):
                a(t[1][0])
                if vper == 2: a(t[1][1]); ninst += 1
                else: vq.insert(0, t[1][1])
            else:
                a(t)
                if vper == 2 and "cvt" in t and "cvt" in str(vq[0]): a(vq.pop(0)); ninst += 1
        elif nopf and wq and wq[0][0] in done_inst and nw in (2, 3):
            a("s_nop 1"); ninst += 1
        else:
            ninst -= 1
        ninst += 1
    assert not pend and bar_done and e_done == 2 and v_ok
    print("left of group 0 after the last MFMA:", len(vq), file=sys.stderr)
    if stamps: a("s_memtime s[82:83]\ns_memrealtime s[66:67]")
    rest = packed(vq)
    for key, t in wq:
        while 8 - (ninst - done_inst[key]) > 0:
            if len(rest) > 1: a(rest.pop(0)); ninst += 1
            else:
                gap = 8 - (ninst - done_inst[key]); a(f"s_nop {gap-1}"); ninst += gap
        a(t); ninst += 1
    c("row group 3: handed over through the waves' progress words (read ahead of the data, checked before use)")
    a(f"ds_write_b32 v{CF}, v{CV}")
    for t in rest: a(t)
    if cp2 is not None: a(f"s_setprio {cp2}")
    a(f"L_retry:\nds_read_b32 v{FV}, v{FA}")
    for t in rd(3, 80): a(t)
    a(f"s_waitcnt lgkmcnt(0)\nv_cmp_ne_u32 vcc, 1, v{FV}\ns_cbranch_vccnz L_retry")
    for t in packed(row(3, 80, 112, 120)): a(t)
    if not stamps: a("s_endpgm")
    else:
        a("L_fin:\ns_barrier")
        if P:
            a("s_waitcnt vmcnt(0)\ns_cmp_lg_u32 s19, 64\ns_cbranch_scc1 L_end\nv_mov_b32 v30, 0")
            for r in range(2, 18): a(f"v_writelane_b32 v30, s{62+r}, {r}")
            a("""
            v_lshrrev_b32 v31, 20, v30
            v_and_b32 v30, 0xfffff, v30
            v_sub_u32 v31, v30, v31
            v_and_b32 v32, 63, v0
            s_lshl_b32 s26, s2, 8
            s_add_u32 s26, s26, 0x10000
            v_lshl_add_u32 v32, v32, 2, s26
            s_mov_b64 exec, 0xffffffff
            global_store_dword v32, v30, s[88:89]
            global_store_dword v32, v31, s[88:89] offset:128
            s_mov_b64 exec, -1
            """)
            stamp_end(a, extra=[], vbase=176)
        elif E:
            a("s_memtime s[84:85]\ns_waitcnt vmcnt(0)\ns_barrier\ns_cmpk_lg_u32 s19, 0\ns_cbranch_scc1 L_end\ns_waitcnt lgkmcnt(0)")
            for r in (64, 66, 56, 58, 60, 62): a(f"s_sub_u32 s{r}, s84, s{r}")
            stamp_end(a, extra=["s64", "s66", "s56", "s58", "s60", "s62"], vbase=176)
        else:
            a("s_memtime s[84:85]\ns_waitcnt vmcnt(0)\ns_barrier\ns_cmpk_lg_u32 s19, 0x100\ns_cbranch_scc1 L_end\ns_waitcnt lgkmcnt(0)")
            a("s_sub_u32 s80, s80, s92\ns_sub_u32 s82, s82, s92\ns_sub_u32 s84, s84, s92\ns_sub_u32 s66, s66, s64\ns_sub_u32 s64, s64, s90")
            stamp_end(a, extra=["s80", "s82", "s84", "s64", "s66"], vbase=176)
        a("L_end:\ns_endpgm")
    c("(unreachable) room for the instruction prefetcher's run-ahead")
    a(".fill 288, 4, 0xbf810000\nL_last:")
    ref = "standalone__batchnorm__prompt.s.ref"
    hdr = open(ref).read().split("; Override")[0] if os.path.exists(ref) else ""
    txt = "\n".join(l for l in a.text().split("\n") if l.strip()) + "\n"
    return wrap(txt, 256, 512, LDS, vgpr=224, accum=224, header=hdr)

if __name__ == "__main__":
    import ast
    names = []
    for spec in sys.argv[1:]:
        name, _, kw = spec.partition(":")
        d = {}
        for item in filter(None, kw.split(",")):
            kk, v = item.split("=")
            try: v = ast.literal_eval(v.replace("_", ","))
            except Exception: v = v.replace("+", " ")
            d[kk] = v
        open(name + ".s", "w").write(gen(**d))
        names.append(name + ".s")
    print(" ".join(names))
```

```python
import sys, os
from asmlib import *

SLOT = 41216
WOFF = 130 * 128
NS = 3
PLANE = SLOT
PARM = NS * SLOT
PLANE1 = PARM + 512
FLAG = PLANE1 + 32768
LDS = FLAG + 1024

def build(first, touch):
    when = {st: 0 for st in first}
    for slot, q, st in touch: when[st] = slot
    assert sorted(when) == list(range(16))
    T = []
    for q in range(4):
        mine = {slot: st for slot, qq, st in touch if qq == q}
        mine[0] = first[q]
        order = []
        for slot in range(16):
            if slot in mine: pick = mine[slot]
            else: pick = min((st for st in range(16) if st not in order and st not in mine.values() and when[st] < slot), key=lambda st: (when[st], st))
            order.append(pick)
        assert sorted(order) == list(range(16))
        T.append(order)
    return T

def gen(stamps=False, nto="sc0 sc1 nt", k0=8, k=8, prio=3, bpos=29, sd=1, n1=10, LAM=7, bl=19, ahead=2,
        lprio=0, cpf=1, vper=2, nopf=1, cp2=0, wsp=3, epg=37, wfirst=0, ntm=15, perm='x45670312f9a8cbed', aodd=None, we=0, wsr=None, wsp_='', col=None, po='wwwxxxxWWW', fl=0, rt=0, sched='l2q', xsw=7, wb_=5, pw=0):
    a = Asm()
    c = lambda t: a.l.append("    ; " + t)
    P = stamps == "P"
    L = stamps == "L"
    tail = lambda s0, q0, ah=ahead: [(s - ah, (s - s0 + q0) & 3, s) for s in range(s0, 16)]
    swp = lambda T_, pm: T_ + [[pm.get(st, st) for st in t] for t in T_]
    sw02 = {0: 2, 1: 3, 2: 0, 3: 1}
    T = {"l4": lambda: swp(build([0,1,2,3], tail(4, 0)), {}),
         "l2p": lambda: swp(build([0,1,0,1], [(1, 0, 2), (1, 1, 3), (2, 2, 4), (2, 3, 5)] + tail(6, 0)), sw02),
         "l2q": lambda: swp(build([0,1,0,1], [(1, 0, 2), (1, 1, 3), (2, 2, 4), (3, 3, 5)] + tail(6, 0)), sw02),
         "l2s": lambda: swp(build([0,1,0,1], [(1, 0, 2), (2, 1, 3), (2, 2, 4), (3, 3, 5)] + tail(6, 0)), sw02),
         "l2t": lambda: swp(build([0,1,0,1], [(1, 0, 2), (1, 1, 3), (2, 2, 4), (3, 3, 5)] + tail(6, 0)), {**sw02, 4: 8, 5: 9, 6: 10, 7: 11, 8: 4, 9: 5, 10: 6, 11: 7}),
         "l2u": lambda: swp(build([0,1,0,1], [(1, 0, 2), (1, 1, 3), (2, 2, 4), (3, 3, 5)] + tail(6, 0)), {**sw02, 8: 12, 9: 13, 10: 14, 11: 15, 12: 8, 13: 9, 14: 10, 15: 11}),
         "l1c": lambda: swp(build([0,0,0,0], [(1, 2, 1), (1, 3, 1), (1, 0, 2), (1, 1, 3), (3, 2, 4), (3, 3, 5), (4, 2, 6), (5, 3, 7)] + tail(8, 0)), {0: 1, 1: 0, 2: 4, 3: 5, 4: 2, 5: 3}),
         "l1d": lambda: swp(build([0,0,0,0], [(1, 0, 1), (1, 1, 1), (1, 2, 1), (1, 3, 1), (2, 0, 2), (2, 1, 3), (2, 2, 2), (2, 3, 3), (3, 0, 4), (3, 1, 5), (4, 2, 6), (5, 3, 7)] + tail(8, 0)), {0: 1, 1: 0, 2: 4, 3: 5, 4: 2, 5: 3}),
         }[sched]()
    if perm: T = [[int(perm[1:][st], 16) for st in t] for t in T]
    if stamps: stamp_begin(a); a("s_load_dwordx2 s[88:89], s[0:1], 64")
    c("---- entry: s[36:51] = x, w, mean, var, g, b, out, dbg.  XCD (wg & 7) owns 8 x 4 tiles of 128 rows x 64 columns")
    a("""
    s_load_dwordx16 s[36:51], s[0:1], 0
    v_readfirstlane_b32 s19, v0
    s_cmpk_ge_u32 s2, 0x100
    s_cbranch_scc1 L_end
    s_lshr_b32 s20, s2, 3
    s_and_b32 s21, s20, 7
    s_and_b32 s22, s2, 4
    s_lshl1_add_u32 s23, s22, s21
    s_and_b32 s24, s2, 3
    s_lshr_b32 s25, s2, 6
    s_lshl2_add_u32 s24, s24, s25
    s_lshl_b32 s23, s23, 18
    s_lshl_b32 s24, s24, 7
    s_getpc_b64 s[16:17]
    L_pc:
    s_cmpk_ge_u32 s19, 0x100
    """)
    c("s23 = row tile * 128 * 2048 B, s24 = column tile * 128 B, s19 = first thread id of the wave")
    a("s_cbranch_scc0 L_load")
    c("waves 4-7 (MFMA waves): read 64 B of this kernel's code each, so that it is in L2 before it is fetched")
    a("""
    s_lshl_b32 s26, s20, 8
    s_add_u32 s26, s26, s19
    s_load_dword s3, s[16:17], s26
    s_waitcnt lgkmcnt(0)
    s_branch L_cons
    L_load:
    """)
    K = sum(t[0] << (4 * i) for i, t in enumerate(T))
    c("---- waves 0-3: LDS-DMA loaders.  v5/v6: x pieces, v7/v8: W pieces (own / partner half), v9: halo rows")
    a(f"""
    v_bfe_u32 v2, v0, 3, 3
    v_and_b32 v3, 7, v0
    v_lshrrev_b32 v4, 1, v2
    v_xor_b32 v5, v3, v4
    s_lshl_b32 s12, s19, 6
    s_add_u32 s26, s12, s23
    v_lshl_add_u32 v5, v5, 4, s26
    v_lshl_add_u32 v5, v2, 14, v5
    {f"s_bitcmp1_b32 s2, {xsw}" if xsw else "s_cmp_lg_u32 s2, s2"}
    s_cselect_b32 s26, 0x20040, 0
    v_xor_b32 v5, s26, v5
    v_xor_b32 v6, 0x20040, v5
    s_lshr_b32 s26, s26, 7
    s_add_u32 s12, s12, s26
    s_xor_b32 s13, s12, 0x400
    v_and_b32 v4, 2, v2
    v_xor_b32 v7, v4, v3
    s_lshl_b32 s26, s19, 9
    s_add_u32 s26, s26, s24
    v_lshl_add_u32 v7, v7, 4, s26
    v_lshl_add_u32 v7, v2, 11, v7
    s_lshr_b32 s14, s19, 5
    s_bitcmp1_b32 s2, {wb_}
    s_cselect_b32 s26, 0x4040, 0
    s_addc_u32 s14, s14, 0
    v_xor_b32 v7, s26, v7
    v_xor_b32 v8, 0x4040, v7
    s_xor_b32 s15, s14, 1
    s_mulk_i32 s14, 3072
    s_mulk_i32 s15, 3072
    s_addk_i32 s14, {WOFF}
    s_addk_i32 s15, {WOFF}
    v_mul_u32_u24 v9, 7, v2
    v_xor_b32 v9, v9, v3
    s_add_u32 s26, s23, 0x40000
    v_lshl_add_u32 v9, v9, 4, s26
    v_mul_u32_u24 v4, 0x40800, v2
    v_sub_u32 v9, v9, v4
    s_add_u32 s29, s21, s25
    s_and_b32 s29, s29, 3
    s_lshl2_add_u32 s26, s2, s22
    s_and_b32 s26, s26, 4
    s_or_b32 s29, s29, s26
    s_lshl_b32 s26, s29, 2
    s_lshr_b32 s31, {K:#x}, s26
    s_and_b32 s31, s31, 15
    s_lshl3_add_u32 s29, s29, L_tab-L_pc
    s_lshl_b32 s6, 1, 22
    s_lshl_b32 s7, 1, 17
    s_lshl_b32 s10, 3, 21
    s_mov_b32 s11, s7
    s_cmp_eq_u32 s19, 0
    s_cselect_b64 vcc, -1, 0
    s_mov_b32 s30, 0
    s_mov_b32 s33, 0
    {"s_memtime s[56:57]" if L else ""}
    s_waitcnt lgkmcnt(0)
    {"s_memtime s[58:59]" if L else ""}
    s_load_dwordx2 s[54:55], s[16:17], s29
    """)
    c("one pass = one c-stage s31; s[54:55] = the stages still to come, s30 = pass, s33 = ring slot offset")
    a("L_adv:\ns_lshl_b32 s32, s31, 17")
    X, W = "s[4:7]", "s[8:11]"
    xp = [(["s12", "s13"][n >> 1], f"buffer_load_dwordx4 v{5 + (n >> 1)}, {X}, s31 offen offset:{(n & 1)*2048} lds") for n in range(4)]
    wa = [("s14", f"buffer_load_dwordx4 v7, {W}, s{[32,34,35][t]} offen offset:{t*1024} lds") for t in range(3)]
    wb = [("s15", f"buffer_load_dwordx4 v8, {W}, s{[32,34,35][t]} offen offset:{t*1024} lds") for t in range(3)]
    pieces = wa + xp + wb
    rec = "s_sub_u32 s60, s56, s58\ns_min_u32 s60, s60, 0xfff\ns_lshl_b32 s60, s60, 20\ns_sub_u32 s61, s56, s92\ns_or_b32 s60, s60, s61\n"
    def bar(n, cond):
        c("previous stage landed (wave 0 has one more load in flight: the halo) -> publish it")
        a(f"""
        {cond}
        s_cbranch_scc0 L_nb{n}
        """)
        if L and n == k0: a("s_cmp_lg_u32 s30, 1\ns_cbranch_scc1 L_st0\ns_memtime s[62:63]\nL_st0:")
        a(f"""
        s_waitcnt vmcnt({n+1})
        s_cbranch_vccnz L_b{n}
        s_waitcnt vmcnt({n})
        L_b{n}:
        """)
        if P: a("s_waitcnt lgkmcnt(0)\n" + rec + "s_mov_b32 s61, m0\ns_mov_b32 m0, s30\ns_nop 0\ns_movreld_b32 s62, s60\ns_mov_b32 m0, s61\ns_memtime s[58:59]")
        if L and n == k0: a("s_cmp_lg_u32 s30, 1\ns_cbranch_scc1 L_st1\ns_memtime s[64:65]\nL_st1:")
        a("s_barrier")
        if P: a("s_memtime s[56:57]")
        a(f"L_nb{n}:")
    assert min(k0, k) > 3
    fill = {0: "s_mov_b64 s[8:9], s[38:39]", 3: "s_mov_b64 exec, -1", 5: "s_nop 0", 7: f"s_add_u32 s33, s33, {SLOT}"}
    for n in range(11):
        if n == k0 and k0 == k: bar(n, "s_cmp_ge_u32 s30, 1")
        elif n == k0: bar(n, "s_cmp_eq_u32 s30, 1")
        elif n == k: bar(n, "s_cmp_ge_u32 s30, 2")
        if n == 10: break
        if n == 1: a(f"s_add_u32 s34, s32, {0x200000-1024}\ns_lshl_b32 s31, s31, 7")
        if n == 2: a(f"s_add_u32 s35, s32, {0x400000-2048}\ns_mov_b64 s[4:5], s[36:37]")
        if n == 3:
            a(f"""
            s_cbranch_vccz L_nh
            s_add_u32 m0, s33, 16384
            s_mov_b64 exec, 0xffff
            buffer_load_dwordx4 v9, {X}, s31 offen lds
            L_nh:
            """)
        m, ins = pieces[n]
        if n in fill: a(f"s_add_u32 m0, s33, {m}\n{fill[n]}")
        a(ins)
    a(f"""
    s_cmp_ge_u32 s33, {SLOT*NS}
    s_cselect_b32 s33, 0, s33
    s_add_u32 s30, s30, 1
    {"s_cmp_lg_u32 s30, 1; s_cbranch_scc1 L_nt; s_memtime s[60:61]; L_nt:".replace("; ", chr(10)) if L else ""}
    s_waitcnt lgkmcnt(0)
    s_and_b32 s31, s54, 15
    s_lshr_b64 s[54:55], s[54:55], 4
    s_cmp_lt_u32 s30, 16
    s_cbranch_scc1 L_adv
    """)
    ER, ER1, PA, O0, FA, FV = 208, 210, 212, 213, 214, 215
    c("---- behind the last stage: BN parameters of the tile's 64 columns (L2 hits by now); epilogue addresses from the MFMA waves")
    a(f"""
    v_and_b32 v16, 63, v0
    v_lshl_add_u32 v10, v16, 1, s24
    global_load_ushort v12, v10, s[40:41]
    global_load_ushort v13, v10, s[42:43]
    global_load_ushort v14, v10, s[44:45]
    global_load_ushort v15, v10, s[46:47]
    s_mov_b32 s26, {PLANE1}
    v_lshl_add_u32 v11, v0, 4, s26
    ds_read_b128 v[{ER}:{ER+3}], v11
    ds_read_b64 v[{PA}:{PA+1}], v11 offset:4096
    s_mov_b32 s26, {PARM}
    v_lshl_add_u32 v17, v16, 2, s26
    s_mov_b32 s50, 0x400000
    s_mov_b32 s51, 0x20000
    s_mov_b32 s26, 0xbfb8aa3b
    s_movk_i32 s27, 0x1000
    s_movk_i32 s28, 0x2000
    s_waitcnt vmcnt(4) lgkmcnt(0)
    """)
    if P: a("s_waitcnt lgkmcnt(0)\n" + rec + "s_mov_b32 s78, s60\ns_memtime s[58:59]")
    a("s_barrier")
    if P: a("s_memtime s[56:57]\ns_waitcnt lgkmcnt(0)\n" + rec + "s_mov_b32 s79, s60")
    if stamps == "E": a("s_memtime s[64:65]")
    def epi_addr():
        a(f"""
        v_lshlrev_b32 v4, 1, v3
        v_xor_b32 v4, v4, v2
        s_and_b32 s26, s19, 0xc0
        s_lshl_b32 s26, s26, 5
        s_add_u32 s26, s26, {PLANE}
        v_lshl_add_u32 v4, v4, 4, s26
        v_lshl_add_u32 v{ER}, v2, 8, v4
        v_xor_b32 v{ER+1}, 16, v{ER}
        v_add_u32 v{ER1}, {PLANE1-PLANE}, v{ER}
        v_add_u32 v{ER1+1}, {PLANE1-PLANE}, v{ER+1}
        v_lshlrev_b32 v4, 5, v3
        v_add_u32 v{PA}, {PARM}, v4
        v_and_b32 v4, 3, v2
        v_lshrrev_b32 v1, 2, v2
        v_lshl_add_u32 v1, v4, 1, v1
        s_bitcmp1_b32 s19, 6
        s_cselect_b32 s27, 9, 0
        v_xor_b32 v1, s27, v1
        s_and_b32 s26, s19, 0x80
        s_lshl_b32 s26, s26, 4
        s_add_u32 s26, s26, s23
        s_add_u32 s26, s26, s24
        v_lshl_add_u32 v4, v3, 4, s26
        v_lshl_add_u32 v{O0}, v1, 14, v4
        s_mov_b32 s50, 0x400000
        s_mov_b32 s51, 0x20000
        s_mov_b32 s26, 0xbfb8aa3b
        s_movk_i32 s29, 0x3000
        v_lshlrev_b32 v4, 4, v0
        v_add_u32 v4, {PLANE1-4096}, v4
        ds_write_b128 v4, v[{ER}:{ER+3}]
        ds_write_b64 v4, v[{PA}:{PA+1}] offset:4096
        """)
    PS, PT = 64, 72
    prd = [f"ds_read_b128 v[{PS}:{PS+3}], v{PA}", f"ds_read_b128 v[{PT}:{PT+3}], v{PA} offset:256", f"ds_read_b128 v[{PS+4}:{PS+7}], v{PA} offset:16", f"ds_read_b128 v[{PT+4}:{PT+7}], v{PA} offset:272"]
    def rd(g, y):
        return [f"ds_read_b128 v[{y+8*pl+4*e}:{y+8*pl+4*e+3}], v{(ER1 if pl else ER)+e} offset:{g*8192}" for e in range(2) for pl in range(2)]
    def row(g, y, z, o):
        p = y + 8
        pr = lambda r: f"v[{r}:{r+1}]"
        A = [(f"v_pk_add_f32 {pr(y+2*n)}, {pr(y+2*n)}, {pr(p+2*n)}", [f"v_add_f32 v{y+m}, v{y+m}, v{p+m}" for m in (2*n, 2*n+1)]) for n in range(4)]
        B = [(f"v_pk_fma_f32 {pr(y+2*n)}, {pr(y+2*n)}, {pr(PS+2*n)}, {pr(PT+2*n)}", [f"v_fma_f32 v{y+m}, v{y+m}, v{PS+m}, v{PT+m}" for m in (2*n, 2*n+1)]) for n in range(4)]
        C = [(f"v_pk_fma_f32 {pr(z+2*n)}, {pr(z+2*n)}, s[26:27], s[26:27] op_sel_hi:[1,0,0]", [f"v_fma_f32 v{z+m}, v{z+m}, s26, s26" for m in (2*n, 2*n+1)]) for n in range(4)]
        M = [(f"v_pk_mul_f32 {pr(y+2*n)}, {pr(y+2*n)}, {pr(z+2*n)}", [f"v_mul_f32 v{y+m}, v{y+m}, v{z+m}" for m in (2*n, 2*n+1)]) for n in range(4)]
        E_ = [f"v_exp_f32 v{z+n}, v{y+n}" for n in range(8)]
        Rr = [f"v_rcp_f32 v{z+n}, v{z+n}" for n in range(8)]
        V = [f"v_cvt_pk_bf16_f32 v{o+n}, v{y+2*n}, v{y+2*n+1}" for n in range(4)]
        S = f"buffer_store_dwordx4 v[{o}:{o+3}], v{O0}, s[48:51], {['0', 's27', 's28', 's29'][g]} offen {nto if ntm >> g & 1 else nto.replace(' nt', '')}"
        return [A[0], A[1], B[0], A[2], B[1], E_[0], A[3], E_[1], B[2], E_[2], B[3], E_[3], C[0], E_[4], E_[5], C[1], E_[6], E_[7], C[2], Rr[0], Rr[1], C[3], Rr[2], Rr[3], M[0], Rr[4], Rr[5], M[1], Rr[6], V[0], Rr[7], M[2], V[1], M[3], V[2], V[3], S]
    packed = lambda L_: [t[0] if isinstance(t, tuple) else t for t in L_]
    c("scale' = -log2(e) * g / sqrt(var + eps), shift' = -log2(e) * (b - mean * g / sqrt(var + eps))")
    a(f"""
    s_waitcnt vmcnt(0)
    v_lshlrev_b32 v13, 16, v13
    v_add_f32 v13, 0x3727c5ac, v13
    v_rsq_f32 v13, v13
    v_lshlrev_b32 v12, 16, v12
    v_lshlrev_b32 v14, 16, v14
    v_lshlrev_b32 v15, 16, v15
    v_mul_f32 v13, v13, v14
    v_fma_f32 v15, -v12, v13, v15
    v_mul_f32 v13, s26, v13
    v_mul_f32 v15, s26, v15
    ds_write_b32 v17, v13
    ds_write_b32 v17, v15 offset:256
    """)
    E = stamps == "E"
    a("s_waitcnt lgkmcnt(0)\ns_barrier")
    for t in prd: a(t)
    if lprio: a(f"s_setprio {lprio}")
    c("row group 0 published (finished by the MFMA waves), then groups 1 and 2 (finished here)")
    a("s_barrier")
    if E: a("s_memtime s[66:67]")
    a("s_barrier")
    if E: a("s_memtime s[56:57]")
    for t in rd(1, 80) + rd(2, 96): a(t)
    if lprio: a("s_setprio 0")
    a("s_waitcnt lgkmcnt(0)")
    if E: a("s_memtime s[58:59]")
    for t in packed(row(1, 80, 112, 128)): a(t)
    if E: a("s_memtime s[60:61]")
    for t in packed(row(2, 96, 120, 132)): a(t)
    if E: a("s_memtime s[62:63]")
    if wsr is not None:
        a(f"""
        s_load_dwordx2 s[44:45], s[0:1], 64
        s_mov_b32 s46, 0x10000000
        s_mov_b32 s47, 0x20000
        v_lshlrev_b32 v1, 7, v0
        s_lshl_b32 s48, s2, 17
        s_add_u32 s48, s48, {wsr << 20}
        s_waitcnt lgkmcnt(0)
        """)
        for i in range(4): a(f"buffer_load_dword v2, v1, s[44:47], s48 offen {wsp_}\ns_add_u32 s48, s48, 0x8000")
        a("s_waitcnt vmcnt(0)")
    a("s_branch L_fin" if stamps else "L_end:\ns_endpgm")
    R = 8
    ACC = lambda j, u: (j * 2 + u) * 4
    XF = lambda buf, j: 64 + buf * 64 + (j + 1) * 4
    WF = lambda buf, kk, u: 64 + buf * 64 + 40 + (kk * 2 + u) * 4
    AX = lambda cls: 192 + cls
    AW = lambda u: 195 + u
    EW = lambda u: 197 + u
    ADDR = list(range(192, 197))
    AL, CF, CV = 199, 204, 205
    c("(unreachable) puts the main loop head on a 32-byte boundary")
    a(f".fill (((32 - ((. - {KNAME} + L_cloop - L_cons) & 31)) & 31) / 4), 4, 0xbf810000")
    a("L_cons:")
    if stamps == "C": a("s_memtime s[68:69]")
    c("---- waves 4-7: wave (kh, nh) accumulates 128 rows x 32 columns over c-half kh of every stage")
    c("touch the BN parameter lines so that the epilogue's loads hit L2")
    if pw:
        for r in (40, 42, 44, 46):
            a(f"s_load_dword s3, s[{r}:{r+1}], s24\ns_load_dword s3, s[{r}:{r+1}], s24 offset:64")
    else:
        a("""
        s_bitcmp1_b32 s19, 6
        s_cselect_b64 s[4:5], s[42:43], s[40:41]
        s_cselect_b64 s[6:7], s[46:47], s[44:45]
        s_bitcmp1_b32 s19, 7
        s_cselect_b64 s[4:5], s[6:7], s[4:5]
        s_load_dword s3, s[4:5], s24
        s_load_dword s3, s[4:5], s24 offset:64
        """)
    if prio: a(f"s_setprio {prio}")
    c("lane (i, G): tile j holds row 8*pi(i)+j; x fragment f = rows 8*pi+f (f = -1..8) serves tap k of tile j = f-k+1")
    a(f"""
    v_and_b32 v10, 15, v0
    v_bfe_u32 v11, v0, 4, 2
    v_lshrrev_b32 v1, 2, v10
    v_lshrrev_b32 v2, 3, v10
    v_xor_b32 v1, v1, v2
    v_and_b32 v1, 1, v1
    v_and_b32 v2, 3, v10
    v_lshl_add_u32 v1, v2, 1, v1
    v_and_or_b32 v1, v10, 8, v1
    v_bfe_u32 v12, v0, 7, 1
    v_bfe_u32 v13, v0, 6, 1
    v_lshl_add_u32 v2, v12, 2, v11
    v_lshrrev_b32 v4, 1, v1
    v_xor_b32 v4, v4, v2
    v_lshlrev_b32 v4, 4, v4
    v_lshl_add_u32 v{AX(1)}, v1, 7, v4
    v_add_u32 v3, -1, v1
    v_bfe_u32 v4, v3, 1, 3
    v_xor_b32 v4, v4, v2
    v_lshlrev_b32 v4, 4, v4
    v_ashrrev_i32 v5, 31, v3
    v_and_b32 v5, 18, v5
    v_add_u32 v3, 0x70, v3
    v_add_u32 v3, v3, v5
    v_lshl_add_u32 v{AX(0)}, v3, 7, v4
    v_add_u32 v3, 1, v1
    v_bfe_u32 v4, v3, 1, 3
    v_xor_b32 v4, v4, v2
    v_lshlrev_b32 v4, 4, v4
    v_and_b32 v5, 16, v3
    v_and_b32 v3, 15, v3
    v_lshl_add_u32 v3, v5, 3, v3
    v_lshl_add_u32 v{AX(2)}, v3, 7, v4
    v_mul_u32_u24 v2, 3072, v2
    v_bfe_u32 v4, v0, 2, 2
    v_lshl_add_u32 v2, v4, 7, v2
    v_and_b32 v5, 3, v0
    v_lshl_add_u32 v2, v5, 3, v2
    v_and_b32 v3, 1, v11
    v_xor_b32 v3, v3, v13
    v_lshrrev_b32 v4, 1, v4
    v_lshl_add_u32 v3, v3, 1, v4
    v_lshl_add_u32 v2, v3, 5, v2
    v_add_u32 v{AW(0)}, {WOFF}, v2
    v_xor_b32 v{AW(1)}, 32, v{AW(0)}
    v_lshl_add_u32 v2, v13, 3, v11
    v_and_b32 v3, 7, v10
    v_xor_b32 v2, v2, v3
    v_lshlrev_b32 v2, 4, v2
    v_lshl_add_u32 v2, v10, 8, v2
    v_mul_u32_u24 v3, {PLANE1-PLANE}, v12
    v_add_u32 v2, v2, v3
    v_add_u32 v{EW(0)}, {PLANE}, v2
    v_xor_b32 v{EW(1)}, 64, v{EW(0)}
    v_lshlrev_b32 v2, 2, v0
    v_add_u32 v{CF}, {FLAG-1024}, v2
    v_mov_b32 v{CV}, 1
    v_and_b32 v4, 3, v0
    v_mul_u32_u24 v4, 0x104, v4
    v_add_u32 v{FA}, {FLAG}, v4
    v_bfe_u32 v2, v0, 3, 3
    v_and_b32 v3, 7, v0
    """)
    epi_addr()
    for n_, r in enumerate(ADDR): a(f"v_mov_b32 v{AL+n_}, v{r}")
    for r in range(0, 64, 2): a(f"v_mov_b64 v[{r}:{r+1}], 0")
    a(f"ds_write_b32 v{CF}, v0\ns_mov_b32 s30, 0\ns_mov_b32 s33, 0\ns_mov_b32 s35, {SLOT}")
    if pw: a("s_waitcnt lgkmcnt(0)")
    if stamps == "C": a("s_memtime s[70:71]")
    tiles = [(j, 0) for j in range(4)] + [(j, 1) for j in range(4)] + [(j, 1) for j in range(4, 8)] + [(j, 0) for j in range(4, 8)]
    def chain(seq):
        out = []
        for n_, (b, j, u) in enumerate(seq): out += [(b, kk, u, j) for kk in ((2, 1, 0) if n_ & 1 else (0, 1, 2))]
        return out
    def mf(b, kk, u, j):
        return f"v_mfma_f32_16x16x32_bf16 v[{ACC(j,u)}:{ACC(j,u)+3}], v[{WF(b,kk,u)}:{WF(b,kk,u)+3}], v[{XF(b,j+kk-1)}:{XF(b,j+kk-1)+3}], v[{ACC(j,u)}:{ACC(j,u)+3}]"
    def reads(buf):
        Lr = []; seen = set()
        for n_, (_, kk, u, j) in enumerate(chain([(buf, j, u) for j, u in tiles])):
            if ("w", kk, u) not in seen:
                seen.add(("w", kk, u)); r = WF(buf, kk, u)
                Lr += [(f"ds_read_b64_tr_b16 v[{r+2*e}:{r+2*e+1}], v{AW(u)} offset:{kk*1024 + e*512}", n_) for e in range(2)]
            f = j + kk - 1
            if ("x", f) not in seen:
                seen.add(("x", f)); r = XF(buf, f)
                cls = 0 if f == -1 else (2 if f == R else 1)
                Lr.append((f"ds_read_b128 v[{r}:{r+3}], v{AX(cls)} offset:{f*2048 if cls == 1 else 0}", n_))
        return Lr
    upd = ["s_add_u32 s33, s33, 1", "s_cmp_eq_u32 s33, 3", f"s_cselect_b32 s34, {(-2*SLOT) & 0xffffffff:#x}, s35", "s_cselect_b32 s33, 0, s33"] + [f"v_add_u32 v{r}, s34, v{r}" for r in ADDR]
    NE = min(22, 45 - bpos)
    WAITS = [-2, 2, 10, 23]
    need = [n_ for _, n_ in reads(0)]
    covered = lambda wi: 22 if wi == len(WAITS) - 1 else sum(1 for n_ in need if n_ <= WAITS[wi + 1])
    def step(buf):
        late = [t for t, _ in reads(buf)[NE:]]
        early = [t for t, _ in reads(buf ^ 1)[:NE]]
        misc = list(upd) + (["s_add_u32 s30, s30, 1", "s_cmp_lt_u32 s30, 7"] if buf else [])
        nr = NE
        for g, m in enumerate(chain([(buf, j, u) for j, u in tiles])):
            a(mf(*m))
            if g in WAITS:
                assert nr >= covered(WAITS.index(g))
                a(f"s_waitcnt lgkmcnt({nr - covered(WAITS.index(g))})")
            elif late: a(late.pop(0)); nr += 1
            elif g < bpos:
                if misc: a(misc.pop(0))
            elif g == bpos:
                assert not misc and g > WAITS[-1]
                a("s_barrier")
            elif early: a(early.pop(0))
            elif g == 46: a(f"s_waitcnt lgkmcnt({NE - covered(0)})")
            elif g == 47 and buf: a("s_cbranch_scc1 L_cloop")
    a("s_barrier")
    if stamps: a("s_memtime s[80:81]\ns_memrealtime s[64:65]")
    for t, _ in reads(0)[:NE]: a(t)
    a(f"s_waitcnt lgkmcnt({NE - covered(0)})")
    c("main loop: two stages per pass; the barrier publishes the next stage and frees the slot just read")
    a("L_cloop:")
    step(0)
    step(1)
    c("last two stages merged so that the row groups finish one after the other; sums go to LDS as they finish")
    seq = [(0, j, u) for j, u in tiles[:n1]]
    for g in range(4):
        u0 = g & 1
        for j, u in ((2*g, u0), (2*g+1, u0), (2*g+1, u0 ^ 1), (2*g, u0 ^ 1)):
            if (j, u) not in tiles[:n1]: seq.append((0, j, u))
            seq.append((1, j, u))
    fm = chain(seq)
    operands = lambda b, kk, u, j: {XF(b, j + kk - 1), WF(b, kk, u), WF(b, kk, u) + 2}
    dst = lambda text: int(text.split("v[")[1].split(":")[0])
    first_use = {}
    for g, m in enumerate(fm):
        for r in operands(*m): first_use.setdefault(r, g)
    r15 = [t for t, _ in reads(1)]
    for n_, r in enumerate(ADDR): r15 = [t.replace(f", v{r} ", f", v{AL+n_} ") for t in r15]
    pend = sorted([(first_use[dst(t)], 0, t) for t, _ in reads(0)[NE:]] + [(first_use[dst(t)], 1, t) for t in r15], key=lambda e: e[0])
    ops = [(dst(t), -2 - NE + n_) for n_, (t, _) in enumerate(reads(0)[:NE])]
    ncov = covered(0)
    bgap = 3 * n1 - bl
    wq = [((j, u), f"ds_write_b128 v{EW(u)}, v[{ACC(j,u)}:{ACC(j,u)+3}] offset:{j*4096}") for b, j, u in seq if b == 1]
    last_use = {}
    for g, m in enumerate(fm):
        for r in operands(*m): last_use[r] = g
    pfree = max(last_use[XF(0, f)] for f in (-1, 0, 1, 2)) + 1
    assert PS == XF(0, -1)
    Z0, OUT0 = XF(1, -1), 216
    zfree = max(last_use[XF(1, f)] for f in (-1, 0)) + 1
    ppend = list(prd); gpend = rd(0, 0); ep_done = False
    vq = []
    for t in row(0, 0, Z0, OUT0): vq.append(t)
    v_ok = False; g_last = None
    ninst = 0; done_inst = {}
    bar_done = False; nw = 0; lastw = -9
    ev = []
    e_done = 0
    for g, m in enumerate(fm):
        a(mf(*m)); ninst += 1
        if m[0] == 1 and g % 3 == 2: done_inst[(m[3], m[2])] = ninst
        nxt = operands(*fm[g + 1]) if g + 1 < len(fm) else set()
        unc = [n_ for n_, (r, _) in enumerate(ops) if n_ >= ncov and r in nxt]
        assert all(r in [o[0] for o in ops] for r in nxt), ("operand never read", g)
        ready = [e for e in pend if e[1] == 0 or bar_done]
        wrote = False
        if unc:
            cc = max(unc) + 1
            while cc < len(ops) and ops[cc][1] <= g - LAM: cc += 1
            if ops[max(unc)][1] > g - LAM: print("note: short read distance at gap", g, g - ops[max(unc)][1], file=sys.stderr)
            a(f"s_waitcnt lgkmcnt({min(15, len(ops) - cc)})"); ncov = cc
        elif wfirst and wq and wq[0][0] in done_inst and ninst - done_inst[wq[0][0]] >= 8 and g - lastw >= wsp:
            a(wq.pop(0)[1]); ops.append((None, g)); nw += 1; lastw = g
            if nw in (4, 12): ev.append([len(ops), 0])
        elif ev and ev[0][1] == 1:
            assert ep_done and not ppend
            a("s_barrier"); ev.pop(0); e_done += 1
        elif ev and ops[ev[0][0] - 1][1] <= g - 3 * sd:
            a(f"s_waitcnt lgkmcnt({len(ops) - ev[0][0]})"); ev[0][1] = 1; ncov = max(ncov, ev[0][0])
        elif e_done and gpend:
            assert g >= pfree
            a(gpend.pop(0)); ops.append((None, g)); g_last = len(ops)
        elif wq and wq[0][0] in done_inst and ninst - done_inst[wq[0][0]] >= 8 and g - lastw >= wsp:
            a(wq.pop(0)[1]); ops.append((None, g)); nw += 1; lastw = g
            if nw in (4, 12): ev.append([len(ops), 0])
        elif not bar_done and g >= bgap:
            a("s_barrier"); bar_done = True
        elif bar_done and not ep_done and g >= epg:
            a("s_barrier"); ep_done = True
        elif ready:
            pend.remove(ready[0]); a(ready[0][2]); ops.append((dst(ready[0][2]), g))
        elif ppend and ep_done and g >= pfree:
            a(ppend.pop(0)); ops.append((None, g))
        elif not v_ok and not gpend and not ppend and ops[g_last - 1][1] <= g - LAM + 1:
            assert g >= zfree
            a(f"s_waitcnt lgkmcnt({len(ops) - g_last})"); ncov = max(ncov, g_last); v_ok = True
        elif v_ok and len(vq) > 1 and vper:
            t = vq.pop(0)
            if isinstance(t, tuple):
                a(t[1][0])
                if vper == 2: a(t[1][1]); ninst += 1
                else: vq.insert(0, t[1][1])
            else:
                a(t)
                if vper == 2 and "cvt" in t and "cvt" in str(vq[0]): a(vq.pop(0)); ninst += 1
        elif nopf and wq and wq[0][0] in done_inst and nw in (2, 3):
            a("s_nop 1"); ninst += 1
        else:
            ninst -= 1
        ninst += 1
    assert not pend and bar_done and e_done == 2 and v_ok
    print("left of group 0 after the last MFMA:", len(vq), file=sys.stderr)
    if stamps: a("s_memtime s[82:83]\ns_memrealtime s[66:67]")
    rest = packed(vq)
    for key, t in wq:
        while 8 - (ninst - done_inst[key]) > 0:
            if len(rest) > 1: a(rest.pop(0)); ninst += 1
            else:
                gap = 8 - (ninst - done_inst[key]); a(f"s_nop {gap-1}"); ninst += gap
        a(t); ninst += 1
    c("row group 3: handed over through the waves' progress words (read ahead of the data, checked before use)")
    a(f"ds_write_b32 v{CF}, v{CV}")
    for t in rest: a(t)
    if cp2 is not None: a(f"s_setprio {cp2}")
    a(f"L_retry:\nds_read_b32 v{FV}, v{FA}")
    for t in rd(3, 80): a(t)
    a(f"s_waitcnt lgkmcnt(0)\nv_cmp_ne_u32 vcc, 1, v{FV}\ns_cbranch_vccnz L_retry")
    for t in packed(row(3, 80, 112, 120)): a(t)
    if not stamps: a("s_endpgm")
    else:
        a("L_fin:\ns_barrier")
        if P:
            a("s_waitcnt vmcnt(0)\ns_cmp_lg_u32 s19, 64\ns_cbranch_scc1 L_end\nv_mov_b32 v30, 0")
            for r in range(2, 18): a(f"v_writelane_b32 v30, s{62+r}, {r}")
            a("""
            v_lshrrev_b32 v31, 20, v30
            v_and_b32 v30, 0xfffff, v30
            v_sub_u32 v31, v30, v31
            v_and_b32 v32, 63, v0
            s_lshl_b32 s26, s2, 8
            s_add_u32 s26, s26, 0x10000
            v_lshl_add_u32 v32, v32, 2, s26
            s_mov_b64 exec, 0xffffffff
            global_store_dword v32, v30, s[88:89]
            global_store_dword v32, v31, s[88:89] offset:128
            s_mov_b64 exec, -1
            """)
            stamp_end(a, extra=[], vbase=176)
        elif L:
            a("s_waitcnt vmcnt(0)\ns_barrier\ns_cmpk_lg_u32 s19, 64\ns_cbranch_scc1 L_end\ns_waitcnt lgkmcnt(0)")
            for r in (56, 58, 60, 62, 64): a(f"s_sub_u32 s{r}, s{r}, s92")
            stamp_end(a, extra=["s56", "s58", "s60", "s62", "s64"], vbase=176)
        elif E:
            a("s_memtime s[84:85]\ns_waitcnt vmcnt(0)\ns_barrier\ns_cmpk_lg_u32 s19, 0\ns_cbranch_scc1 L_end\ns_waitcnt lgkmcnt(0)")
            for r in (64, 66, 56, 58, 60, 62): a(f"s_sub_u32 s{r}, s84, s{r}")
            stamp_end(a, extra=["s64", "s66", "s56", "s58", "s60", "s62"], vbase=176)
        else:
            a("s_memtime s[84:85]\ns_waitcnt vmcnt(0)\ns_barrier\ns_cmpk_lg_u32 s19, 0x100\ns_cbranch_scc1 L_end\ns_waitcnt lgkmcnt(0)")
            a("s_sub_u32 s80, s80, s92\ns_sub_u32 s82, s82, s92\ns_sub_u32 s84, s84, s92\ns_sub_u32 s66, s66, s64\ns_sub_u32 s64, s64, s90")
            if stamps == "C": a("s_sub_u32 s68, s68, s92\ns_sub_u32 s70, s70, s92")
            stamp_end(a, extra=["s80", "s82", "s84", "s64", "s66"] + (["s68", "s70"] if stamps == "C" else []), vbase=176)
        a("L_end:\ns_endpgm")
    c("order of the c-stages after the first (4 bits each) per tile class: spreads the first touch of every L2 line over the CUs")
    a(".type L_tab,@object\nL_tab:")
    for t in T:
        p_ = sum(st << (4 * i) for i, st in enumerate(t[1:]))
        a(f".long {p_ & 0xffffffff:#010x}, {p_ >> 32:#010x}")
    a(".size L_tab, 64\nL_pad:")
    c("(unreachable) keeps the code read above and the instruction prefetcher's run-ahead inside this section")
    a(f".fill (8448 - (. - L_pc)) / 4, 4, 0xbf810000")
    ref = "standalone__batchnorm__prompt.s.ref"
    hdr = open(ref).read().split("; Override")[0] if os.path.exists(ref) else ""
    txt = "\n".join(l for l in a.text().split("\n") if l.strip()) + "\n"
    if rt:
        txt = txt.replace("s_memtime s[56:57]", "s_memrealtime s[56:57]").replace("s_memtime s[58:59]", "s_memrealtime s[58:59]").replace("s_sub_u32 s61, s56, s92", "s_sub_u32 s61, s56, s90\n    s_mul_i32 s61, s61, 10")
    return wrap(txt, 256, 512, LDS, vgpr=224, accum=224, header=hdr)

if __name__ == "__main__":
    import ast
    names = []
    for spec in sys.argv[1:]:
        name, _, kw = spec.partition(":")
        d = {}
        for item in filter(None, kw.split(",")):
            kk, v = item.split("=")
            try: v = ast.literal_eval(v.replace("_", ","))
            except Exception: v = v.replace("+", " ")
            d[kk] = v
        open(name + ".s", "w").write(gen(**d))
        names.append(name + ".s")
    print(" ".join(names))
```

```python
import sys, os
from asmlib import *

SLOT = 41216
WOFF = 130 * 128
NS = 3
PLANE = SLOT
PARM = NS * SLOT
PLANE1 = PARM + 512
FLAG = PLANE1 + 32768
LDS = FLAG + 1024

def build(first, touch):
    when = {st: 0 for st in first}
    for slot, q, st in touch: when[st] = slot
    assert sorted(when) == list(range(16))
    T = []
    for q in range(4):
        mine = {slot: st for slot, qq, st in touch if qq == q}
        mine[0] = first[q]
        order = []
        for slot in range(16):
            if slot in mine: pick = mine[slot]
            else: pick = min((st for st in range(16) if st not in order and st not in mine.values() and when[st] < slot), key=lambda st: (when[st], st))
            order.append(pick)
        assert sorted(order) == list(range(16))
        T.append(order)
    return T

def gen(stamps=False, nto="sc0 sc1 nt", k0=8, k=8, prio=3, bpos=29, sd=1, n1=10, LAM=7, bl=19, ahead=2,
        lprio=0, cpf=1, vper=2, nopf=1, cp2=0, wsp=3, epg=37, wfirst=0, ntm=15, perm='x456708123fa9cbed', aodd=None, we=0, wsr=None, wsp_='', col=None, po='wwwxxxxWWW', fl=0, rt=0, sched='l2q', xsw=7, wb_=5, pw=0, probe=None):
    a = Asm()
    c = lambda t: a.l.append("    ; " + t)
    P = stamps == "P"
    L = stamps == "L"
    tail = lambda s0, q0, ah=ahead: [(s - ah, (s - s0 + q0) & 3, s) for s in range(s0, 16)]
    swp = lambda T_, pm: T_ + [[pm.get(st, st) for st in t] for t in T_]
    sw02 = {0: 2, 1: 3, 2: 0, 3: 1}
    T = {"l4": lambda: swp(build([0,1,2,3], tail(4, 0)), {}),
         "l2p": lambda: swp(build([0,1,0,1], [(1, 0, 2), (1, 1, 3), (2, 2, 4), (2, 3, 5)] + tail(6, 0)), sw02),
         "l2q": lambda: swp(build([0,1,0,1], [(1, 0, 2), (1, 1, 3), (2, 2, 4), (3, 3, 5)] + tail(6, 0)), sw02),
         "l2s": lambda: swp(build([0,1,0,1], [(1, 0, 2), (2, 1, 3), (2, 2, 4), (3, 3, 5)] + tail(6, 0)), sw02),
         "l2v": lambda: swp(build([0,1,0,1], [(1, 0, 2), (1, 1, 3)] + tail(4, 2)), sw02),
         "l2w": lambda: swp(build([0,1,0,1], [(1, 0, 2), (2, 1, 3)] + tail(4, 2)), sw02),
         "l2x": lambda: swp(build([0,1,0,1], [(2, 0, 2), (2, 1, 3), (2, 2, 2), (2, 3, 3)] + tail(4, 2)), sw02),
         "l2y": lambda: swp(build([0,1,0,1], [(1, 0, 2), (2, 1, 3)] + tail(4, 2)), {**sw02, 4: 6, 5: 7, 6: 4, 7: 5}),
         "l2z": lambda: swp(build([0,1,0,1], [(1, 0, 2), (2, 1, 3), (3, 2, 4), (4, 3, 5), (5, 0, 6), (6, 1, 7), (7, 0, 8), (8, 1, 9), (9, 2, 10), (10, 3, 11), (11, 2, 12), (12, 3, 13), (13, 0, 14), (14, 1, 15)]), {st: st ^ 2 for st in range(12)}),
         "l2t": lambda: swp(build([0,1,0,1], [(1, 0, 2), (1, 1, 3), (2, 2, 4), (3, 3, 5)] + tail(6, 0)), {**sw02, 4: 8, 5: 9, 6: 10, 7: 11, 8: 4, 9: 5, 10: 6, 11: 7}),
         "l2u": lambda: swp(build([0,1,0,1], [(1, 0, 2), (1, 1, 3), (2, 2, 4), (3, 3, 5)] + tail(6, 0)), {**sw02, 8: 12, 9: 13, 10: 14, 11: 15, 12: 8, 13: 9, 14: 10, 15: 11}),
         "l1c": lambda: swp(build([0,0,0,0], [(1, 2, 1), (1, 3, 1), (1, 0, 2), (1, 1, 3), (3, 2, 4), (3, 3, 5), (4, 2, 6), (5, 3, 7)] + tail(8, 0)), {0: 1, 1: 0, 2: 4, 3: 5, 4: 2, 5: 3}),
         "l1d": lambda: swp(build([0,0,0,0], [(1, 0, 1), (1, 1, 1), (1, 2, 1), (1, 3, 1), (2, 0, 2), (2, 1, 3), (2, 2, 2), (2, 3, 3), (3, 0, 4), (3, 1, 5), (4, 2, 6), (5, 3, 7)] + tail(8, 0)), {0: 1, 1: 0, 2: 4, 3: 5, 4: 2, 5: 3}),
         }[sched]()
    if perm: T = [[int(perm[1:][st], 16) for st in t] for t in T]
    if stamps: stamp_begin(a); a("s_load_dwordx2 s[88:89], s[0:1], 64")
    if probe: a("s_memrealtime s[70:71]")
    c("---- entry: s[36:51] = x, w, mean, var, g, b, out, dbg.  XCD (wg & 7) owns 8 x 4 tiles of 128 rows x 64 columns")
    a("""
    s_load_dwordx16 s[36:51], s[0:1], 0
    v_readfirstlane_b32 s19, v0
    s_cmpk_ge_u32 s2, 0x100
    s_cbranch_scc1 L_end
    s_lshr_b32 s20, s2, 3
    s_and_b32 s21, s20, 7
    s_and_b32 s22, s2, 4
    s_lshl1_add_u32 s23, s22, s21
    s_and_b32 s24, s2, 3
    s_lshr_b32 s25, s2, 6
    s_lshl2_add_u32 s24, s24, s25
    s_lshl_b32 s23, s23, 18
    s_lshl_b32 s24, s24, 7
    s_getpc_b64 s[16:17]
    L_pc:
    s_cmpk_ge_u32 s19, 0x100
    """)
    c("s23 = row tile * 128 * 2048 B, s24 = column tile * 128 B, s19 = first thread id of the wave")
    a("s_cbranch_scc0 L_load")
    c("waves 4-7 (MFMA waves): read 64 B of this kernel's code each, so that it is in L2 before it is fetched")
    a("""
    s_lshl_b32 s26, s20, 8
    s_add_u32 s26, s26, s19
    s_load_dword s3, s[16:17], s26
    s_waitcnt lgkmcnt(0)
    s_branch L_cons
    L_load:
    """)
    K = sum(t[0] << (4 * i) for i, t in enumerate(T))
    c("---- waves 0-3: LDS-DMA loaders.  v5/v6: x pieces, v7/v8: W pieces (own / partner half), v9: halo rows")
    a(f"""
    v_bfe_u32 v2, v0, 3, 3
    v_and_b32 v3, 7, v0
    v_lshrrev_b32 v4, 1, v2
    v_xor_b32 v5, v3, v4
    s_lshl_b32 s12, s19, 6
    s_add_u32 s26, s12, s23
    v_lshl_add_u32 v5, v5, 4, s26
    v_lshl_add_u32 v5, v2, 14, v5
    {f"s_bitcmp1_b32 s2, {xsw}" if xsw else "s_cmp_lg_u32 s2, s2"}
    s_cselect_b32 s26, 0x20040, 0
    v_xor_b32 v5, s26, v5
    v_xor_b32 v6, 0x20040, v5
    s_lshr_b32 s26, s26, 7
    s_add_u32 s12, s12, s26
    s_xor_b32 s13, s12, 0x400
    v_and_b32 v4, 2, v2
    v_xor_b32 v7, v4, v3
    s_lshl_b32 s26, s19, 9
    s_add_u32 s26, s26, s24
    v_lshl_add_u32 v7, v7, 4, s26
    v_lshl_add_u32 v7, v2, 11, v7
    s_lshr_b32 s14, s19, 5
    s_bitcmp1_b32 s2, {wb_}
    s_cselect_b32 s26, 0x4040, 0
    s_addc_u32 s14, s14, 0
    v_xor_b32 v7, s26, v7
    v_xor_b32 v8, 0x4040, v7
    s_xor_b32 s15, s14, 1
    s_mulk_i32 s14, 3072
    s_mulk_i32 s15, 3072
    s_addk_i32 s14, {WOFF}
    s_addk_i32 s15, {WOFF}
    v_mul_u32_u24 v9, 7, v2
    v_xor_b32 v9, v9, v3
    s_add_u32 s26, s23, 0x40000
    v_lshl_add_u32 v9, v9, 4, s26
    v_mul_u32_u24 v4, 0x40800, v2
    v_sub_u32 v9, v9, v4
    s_add_u32 s29, s21, s25
    s_and_b32 s29, s29, 3
    s_lshl2_add_u32 s26, s2, s22
    s_and_b32 s26, s26, 4
    s_or_b32 s29, s29, s26
    s_lshl_b32 s26, s29, 2
    s_lshr_b32 s31, {K:#x}, s26
    s_and_b32 s31, s31, 15
    s_lshl3_add_u32 s29, s29, L_tab-L_pc
    s_lshl_b32 s6, 1, 22
    s_lshl_b32 s7, 1, 17
    s_lshl_b32 s10, 3, 21
    s_mov_b32 s11, s7
    s_cmp_eq_u32 s19, 0
    s_cselect_b64 vcc, -1, 0
    s_mov_b32 s30, 0
    s_mov_b32 s33, 0
    {"s_memtime s[56:57]" if L else ""}
    s_waitcnt lgkmcnt(0)
    {"s_memtime s[58:59]" if L else ""}
    {"s_memrealtime s[72:73]" if probe == "ka" else ""}
    s_load_dwordx2 s[54:55], s[16:17], s29
    """)
    c("one pass = one c-stage s31; s[54:55] = the stages still to come, s30 = pass, s33 = ring slot offset")
    a("L_adv:\ns_lshl_b32 s32, s31, 17")
    X, W = "s[4:7]", "s[8:11]"
    xp = [(["s12", "s13"][n >> 1], f"buffer_load_dwordx4 v{5 + (n >> 1)}, {X}, s31 offen offset:{(n & 1)*2048} lds") for n in range(4)]
    wa = [("s14", f"buffer_load_dwordx4 v7, {W}, s{[32,34,35][t]} offen offset:{t*1024} lds") for t in range(3)]
    wb = [("s15", f"buffer_load_dwordx4 v8, {W}, s{[32,34,35][t]} offen offset:{t*1024} lds") for t in range(3)]
    pieces = wa + xp + wb
    rec = "s_sub_u32 s60, s56, s58\ns_min_u32 s60, s60, 0xfff\ns_lshl_b32 s60, s60, 20\ns_sub_u32 s61, s56, s92\ns_or_b32 s60, s60, s61\n"
    def bar(n, cond):
        c("previous stage landed (wave 0 has one more load in flight: the halo) -> publish it")
        a(f"""
        {cond}
        s_cbranch_scc0 L_nb{n}
        """)
        if L and n == k0: a("s_cmp_lg_u32 s30, 1\ns_cbranch_scc1 L_st0\ns_memtime s[62:63]\nL_st0:")
        a(f"""
        s_waitcnt vmcnt({n+1})
        s_cbranch_vccnz L_b{n}
        s_waitcnt vmcnt({n})
        L_b{n}:
        """)
        if P: a("s_waitcnt lgkmcnt(0)\n" + rec + "s_mov_b32 s61, m0\ns_mov_b32 m0, s30\ns_nop 0\ns_movreld_b32 s62, s60\ns_mov_b32 m0, s61\ns_memtime s[58:59]")
        if L and n == k0: a("s_cmp_lg_u32 s30, 1\ns_cbranch_scc1 L_st1\ns_memtime s[64:65]\nL_st1:")
        a("s_barrier")
        if P: a("s_memtime s[56:57]")
        a(f"L_nb{n}:")
    assert min(k0, k) > 3
    fill = {0: "s_mov_b64 s[8:9], s[38:39]", 3: "s_mov_b64 exec, -1", 5: "s_nop 0", 7: f"s_add_u32 s33, s33, {SLOT}"}
    for n in range(11):
        if n == k0 and k0 == k: bar(n, "s_cmp_ge_u32 s30, 1")
        elif n == k0: bar(n, "s_cmp_eq_u32 s30, 1")
        elif n == k: bar(n, "s_cmp_ge_u32 s30, 2")
        if n == 10: break
        if n == 1: a(f"s_add_u32 s34, s32, {0x200000-1024}\ns_lshl_b32 s31, s31, 7")
        if n == 2: a(f"s_add_u32 s35, s32, {0x400000-2048}\ns_mov_b64 s[4:5], s[36:37]")
        if n == 3:
            a(f"""
            s_cbranch_vccz L_nh
            s_add_u32 m0, s33, 16384
            s_mov_b64 exec, 0xffff
            buffer_load_dwordx4 v9, {X}, s31 offen lds
            L_nh:
            """)
        m, ins = pieces[n]
        if n in fill: a(f"s_add_u32 m0, s33, {m}\n{fill[n]}")
        a(ins)
    a(f"""
    s_cmp_ge_u32 s33, {SLOT*NS}
    s_cselect_b32 s33, 0, s33
    s_add_u32 s30, s30, 1
    {"s_cmp_lg_u32 s30, 1; s_cbranch_scc1 L_nt; s_memtime s[60:61]; L_nt:".replace("; ", chr(10)) if L else ""}
    s_waitcnt lgkmcnt(0)
    s_and_b32 s31, s54, 15
    s_lshr_b64 s[54:55], s[54:55], 4
    s_cmp_lt_u32 s30, 16
    s_cbranch_scc1 L_adv
    """)
    ER, ER1, PA, O0, FA, FV = 208, 210, 212, 213, 214, 215
    c("---- behind the last stage: BN parameters of the tile's 64 columns (L2 hits by now); epilogue addresses from the MFMA waves")
    a(f"""
    v_and_b32 v16, 63, v0
    v_lshl_add_u32 v10, v16, 1, s24
    global_load_ushort v12, v10, s[40:41]
    global_load_ushort v13, v10, s[42:43]
    global_load_ushort v14, v10, s[44:45]
    global_load_ushort v15, v10, s[46:47]
    s_mov_b32 s26, {PLANE1}
    v_lshl_add_u32 v11, v0, 4, s26
    ds_read_b128 v[{ER}:{ER+3}], v11
    ds_read_b64 v[{PA}:{PA+1}], v11 offset:4096
    s_mov_b32 s26, {PARM}
    v_lshl_add_u32 v17, v16, 2, s26
    s_mov_b32 s50, 0x400000
    s_mov_b32 s51, 0x20000
    s_mov_b32 s26, 0xbfb8aa3b
    s_movk_i32 s27, 0x1000
    s_movk_i32 s28, 0x2000
    s_waitcnt vmcnt(4) lgkmcnt(0)
    """)
    if P: a("s_waitcnt lgkmcnt(0)\n" + rec + "s_mov_b32 s78, s60\ns_memtime s[58:59]")
    a("s_barrier")
    if P: a("s_memtime s[56:57]\ns_waitcnt lgkmcnt(0)\n" + rec + "s_mov_b32 s79, s60")
    if stamps == "E": a("s_memtime s[64:65]")
    def epi_addr():
        a(f"""
        v_lshlrev_b32 v4, 1, v3
        v_xor_b32 v4, v4, v2
        s_and_b32 s26, s19, 0xc0
        s_lshl_b32 s26, s26, 5
        s_add_u32 s26, s26, {PLANE}
        v_lshl_add_u32 v4, v4, 4, s26
        v_lshl_add_u32 v{ER}, v2, 8, v4
        v_xor_b32 v{ER+1}, 16, v{ER}
        v_add_u32 v{ER1}, {PLANE1-PLANE}, v{ER}
        v_add_u32 v{ER1+1}, {PLANE1-PLANE}, v{ER+1}
        v_lshlrev_b32 v4, 5, v3
        v_add_u32 v{PA}, {PARM}, v4
        v_and_b32 v4, 3, v2
        v_lshrrev_b32 v1, 2, v2
        v_lshl_add_u32 v1, v4, 1, v1
        s_bitcmp1_b32 s19, 6
        s_cselect_b32 s27, 9, 0
        v_xor_b32 v1, s27, v1
        s_and_b32 s26, s19, 0x80
        s_lshl_b32 s26, s26, 4
        s_add_u32 s26, s26, s23
        s_add_u32 s26, s26, s24
        v_lshl_add_u32 v4, v3, 4, s26
        v_lshl_add_u32 v{O0}, v1, 14, v4
        s_mov_b32 s50, 0x400000
        s_mov_b32 s51, 0x20000
        s_mov_b32 s26, 0xbfb8aa3b
        s_movk_i32 s29, 0x3000
        v_lshlrev_b32 v4, 4, v0
        v_add_u32 v4, {PLANE1-4096}, v4
        ds_write_b128 v4, v[{ER}:{ER+3}]
        ds_write_b64 v4, v[{PA}:{PA+1}] offset:4096
        """)
    PS, PT = 64, 72
    prd = [f"ds_read_b128 v[{PS}:{PS+3}], v{PA}", f"ds_read_b128 v[{PT}:{PT+3}], v{PA} offset:256", f"ds_read_b128 v[{PS+4}:{PS+7}], v{PA} offset:16", f"ds_read_b128 v[{PT+4}:{PT+7}], v{PA} offset:272"]
    def rd(g, y):
        return [f"ds_read_b128 v[{y+8*pl+4*e}:{y+8*pl+4*e+3}], v{(ER1 if pl else ER)+e} offset:{g*8192}" for e in range(2) for pl in range(2)]
    def row(g, y, z, o):
        p = y + 8
        pr = lambda r: f"v[{r}:{r+1}]"
        A = [(f"v_pk_add_f32 {pr(y+2*n)}, {pr(y+2*n)}, {pr(p+2*n)}", [f"v_add_f32 v{y+m}, v{y+m}, v{p+m}" for m in (2*n, 2*n+1)]) for n in range(4)]
        B = [(f"v_pk_fma_f32 {pr(y+2*n)}, {pr(y+2*n)}, {pr(PS+2*n)}, {pr(PT+2*n)}", [f"v_fma_f32 v{y+m}, v{y+m}, v{PS+m}, v{PT+m}" for m in (2*n, 2*n+1)]) for n in range(4)]
        C = [(f"v_pk_fma_f32 {pr(z+2*n)}, {pr(z+2*n)}, s[26:27], s[26:27] op_sel_hi:[1,0,0]", [f"v_fma_f32 v{z+m}, v{z+m}, s26, s26" for m in (2*n, 2*n+1)]) for n in range(4)]
        M = [(f"v_pk_mul_f32 {pr(y+2*n)}, {pr(y+2*n)}, {pr(z+2*n)}", [f"v_mul_f32 v{y+m}, v{y+m}, v{z+m}" for m in (2*n, 2*n+1)]) for n in range(4)]
        E_ = [f"v_exp_f32 v{z+n}, v{y+n}" for n in range(8)]
        Rr = [f"v_rcp_f32 v{z+n}, v{z+n}" for n in range(8)]
        V = [f"v_cvt_pk_bf16_f32 v{o+n}, v{y+2*n}, v{y+2*n+1}" for n in range(4)]
        S = f"buffer_store_dwordx4 v[{o}:{o+3}], v{O0}, s[48:51], {['0', 's27', 's28', 's29'][g]} offen {nto if ntm >> g & 1 else nto.replace(' nt', '')}"
        return [A[0], A[1], B[0], A[2], B[1], E_[0], A[3], E_[1], B[2], E_[2], B[3], E_[3], C[0], E_[4], E_[5], C[1], E_[6], E_[7], C[2], Rr[0], Rr[1], C[3], Rr[2], Rr[3], M[0], Rr[4], Rr[5], M[1], Rr[6], V[0], Rr[7], M[2], V[1], M[3], V[2], V[3], S]
    packed = lambda L_: [t[0] if isinstance(t, tuple) else t for t in L_]
    c("scale' = -log2(e) * g / sqrt(var + eps), shift' = -log2(e) * (b - mean * g / sqrt(var + eps))")
    a(f"""
    s_waitcnt vmcnt(0)
    v_lshlrev_b32 v13, 16, v13
    v_add_f32 v13, 0x3727c5ac, v13
    v_rsq_f32 v13, v13
    v_lshlrev_b32 v12, 16, v12
    v_lshlrev_b32 v14, 16, v14
    v_lshlrev_b32 v15, 16, v15
    v_mul_f32 v13, v13, v14
    v_fma_f32 v15, -v12, v13, v15
    v_mul_f32 v13, s26, v13
    v_mul_f32 v15, s26, v15
    ds_write_b32 v17, v13
    ds_write_b32 v17, v15 offset:256
    """)
    E = stamps == "E"
    a("s_waitcnt lgkmcnt(0)\ns_barrier")
    for t in prd: a(t)
    if lprio: a(f"s_setprio {lprio}")
    c("row group 0 published (finished by the MFMA waves), then groups 1 and 2 (finished here)")
    a("s_barrier")
    if E: a("s_memtime s[66:67]")
    a("s_barrier")
    if E: a("s_memtime s[56:57]")
    for t in rd(1, 80) + rd(2, 96): a(t)
    if lprio: a("s_setprio 0")
    a("s_waitcnt lgkmcnt(0)")
    if E: a("s_memtime s[58:59]")
    for t in packed(row(1, 80, 112, 128)): a(t)
    if E: a("s_memtime s[60:61]")
    for t in packed(row(2, 96, 120, 132)): a(t)
    if E: a("s_memtime s[62:63]")

    def spin(lo, hi, sh, tag):
        a(f"""
        s_waitcnt vmcnt(0)
        s_memrealtime s[76:77]
        s_waitcnt lgkmcnt(0)
        s_sub_u32 s78, {hi}, {lo}
        s_lshl_b32 s78, s78, {sh}
        s_min_u32 s78, s78, 20000
        L_probe{tag}:
        s_memrealtime s[60:61]
        s_waitcnt lgkmcnt(0)
        s_sub_u32 s62, s60, s76
        s_cmp_lt_u32 s62, s78
        s_cbranch_scc1 L_probe{tag}
        """)
    if probe == "ka": spin("s70", "s72", 4, "a")
    if wsr is not None:
        a(f"""
        s_load_dwordx2 s[44:45], s[0:1], 64
        s_mov_b32 s46, 0x10000000
        s_mov_b32 s47, 0x20000
        v_lshlrev_b32 v1, 7, v0
        s_lshl_b32 s48, s2, 17
        s_add_u32 s48, s48, {wsr << 20}
        s_waitcnt lgkmcnt(0)
        """)
        for i in range(4): a(f"buffer_load_dword v2, v1, s[44:47], s48 offen {wsp_}\ns_add_u32 s48, s48, 0x8000")
        a("s_waitcnt vmcnt(0)")
    a("s_branch L_fin" if stamps else "L_end:\ns_endpgm")
    R = 8
    ACC = lambda j, u: (j * 2 + u) * 4
    XF = lambda buf, j: 64 + buf * 64 + (j + 1) * 4
    WF = lambda buf, kk, u: 64 + buf * 64 + 40 + (kk * 2 + u) * 4
    AX = lambda cls: 192 + cls
    AW = lambda u: 195 + u
    EW = lambda u: 197 + u
    ADDR = list(range(192, 197))
    AL, CF, CV = 199, 204, 205
    c("(unreachable) puts the main loop head on a 32-byte boundary")
    a(f".fill (((32 - ((. - {KNAME} + L_cloop - L_cons) & 31)) & 31) / 4), 4, 0xbf810000")
    a("L_cons:")
    if stamps == "C": a("s_memtime s[68:69]")
    c("---- waves 4-7: wave (kh, nh) accumulates 128 rows x 32 columns over c-half kh of every stage")
    c("touch the BN parameter lines so that the epilogue's loads hit L2")
    if pw:
        for r in (40, 42, 44, 46):
            a(f"s_load_dword s3, s[{r}:{r+1}], s24\ns_load_dword s3, s[{r}:{r+1}], s24 offset:64")
    else:
        a("""
        s_bitcmp1_b32 s19, 6
        s_cselect_b64 s[4:5], s[42:43], s[40:41]
        s_cselect_b64 s[6:7], s[46:47], s[44:45]
        s_bitcmp1_b32 s19, 7
        s_cselect_b64 s[4:5], s[6:7], s[4:5]
        s_load_dword s3, s[4:5], s24
        s_load_dword s3, s[4:5], s24 offset:64
        """)
    if prio: a(f"s_setprio {prio}")
    c("lane (i, G): tile j holds row 8*pi(i)+j; x fragment f = rows 8*pi+f (f = -1..8) serves tap k of tile j = f-k+1")
    a(f"""
    v_and_b32 v10, 15, v0
    v_bfe_u32 v11, v0, 4, 2
    v_lshrrev_b32 v1, 2, v10
    v_lshrrev_b32 v2, 3, v10
    v_xor_b32 v1, v1, v2
    v_and_b32 v1, 1, v1
    v_and_b32 v2, 3, v10
    v_lshl_add_u32 v1, v2, 1, v1
    v_and_or_b32 v1, v10, 8, v1
    v_bfe_u32 v12, v0, 7, 1
    v_bfe_u32 v13, v0, 6, 1
    v_lshl_add_u32 v2, v12, 2, v11
    v_lshrrev_b32 v4, 1, v1
    v_xor_b32 v4, v4, v2
    v_lshlrev_b32 v4, 4, v4
    v_lshl_add_u32 v{AX(1)}, v1, 7, v4
    v_add_u32 v3, -1, v1
    v_bfe_u32 v4, v3, 1, 3
    v_xor_b32 v4, v4, v2
    v_lshlrev_b32 v4, 4, v4
    v_ashrrev_i32 v5, 31, v3
    v_and_b32 v5, 18, v5
    v_add_u32 v3, 0x70, v3
    v_add_u32 v3, v3, v5
    v_lshl_add_u32 v{AX(0)}, v3, 7, v4
    v_add_u32 v3, 1, v1
    v_bfe_u32 v4, v3, 1, 3
    v_xor_b32 v4, v4, v2
    v_lshlrev_b32 v4, 4, v4
    v_and_b32 v5, 16, v3
    v_and_b32 v3, 15, v3
    v_lshl_add_u32 v3, v5, 3, v3
    v_lshl_add_u32 v{AX(2)}, v3, 7, v4
    v_mul_u32_u24 v2, 3072, v2
    v_bfe_u32 v4, v0, 2, 2
    v_lshl_add_u32 v2, v4, 7, v2
    v_and_b32 v5, 3, v0
    v_lshl_add_u32 v2, v5, 3, v2
    v_and_b32 v3, 1, v11
    v_xor_b32 v3, v3, v13
    v_lshrrev_b32 v4, 1, v4
    v_lshl_add_u32 v3, v3, 1, v4
    v_lshl_add_u32 v2, v3, 5, v2
    v_add_u32 v{AW(0)}, {WOFF}, v2
    v_xor_b32 v{AW(1)}, 32, v{AW(0)}
    v_lshl_add_u32 v2, v13, 3, v11
    v_and_b32 v3, 7, v10
    v_xor_b32 v2, v2, v3
    v_lshlrev_b32 v2, 4, v2
    v_lshl_add_u32 v2, v10, 8, v2
    v_mul_u32_u24 v3, {PLANE1-PLANE}, v12
    v_add_u32 v2, v2, v3
    v_add_u32 v{EW(0)}, {PLANE}, v2
    v_xor_b32 v{EW(1)}, 64, v{EW(0)}
    v_lshlrev_b32 v2, 2, v0
    v_add_u32 v{CF}, {FLAG-1024}, v2
    v_mov_b32 v{CV}, 1
    v_and_b32 v4, 3, v0
    v_mul_u32_u24 v4, 0x104, v4
    v_add_u32 v{FA}, {FLAG}, v4
    v_bfe_u32 v2, v0, 3, 3
    v_and_b32 v3, 7, v0
    """)
    epi_addr()
    for n_, r in enumerate(ADDR): a(f"v_mov_b32 v{AL+n_}, v{r}")
    for r in range(0, 64, 2): a(f"v_mov_b64 v[{r}:{r+1}], 0")
    a(f"ds_write_b32 v{CF}, v0\ns_mov_b32 s30, 0\ns_mov_b32 s33, 0\ns_mov_b32 s35, {SLOT}")
    if pw: a("s_waitcnt lgkmcnt(0)")
    if stamps == "C": a("s_memtime s[70:71]")
    tiles = [(j, 0) for j in range(4)] + [(j, 1) for j in range(4)] + [(j, 1) for j in range(4, 8)] + [(j, 0) for j in range(4, 8)]
    def chain(seq):
        out = []
        for n_, (b, j, u) in enumerate(seq): out += [(b, kk, u, j) for kk in ((2, 1, 0) if n_ & 1 else (0, 1, 2))]
        return out
    def mf(b, kk, u, j):
        return f"v_mfma_f32_16x16x32_bf16 v[{ACC(j,u)}:{ACC(j,u)+3}], v[{WF(b,kk,u)}:{WF(b,kk,u)+3}], v[{XF(b,j+kk-1)}:{XF(b,j+kk-1)+3}], v[{ACC(j,u)}:{ACC(j,u)+3}]"
    def reads(buf):
        Lr = []; seen = set()
        for n_, (_, kk, u, j) in enumerate(chain([(buf, j, u) for j, u in tiles])):
            if ("w", kk, u) not in seen:
                seen.add(("w", kk, u)); r = WF(buf, kk, u)
                Lr += [(f"ds_read_b64_tr_b16 v[{r+2*e}:{r+2*e+1}], v{AW(u)} offset:{kk*1024 + e*512}", n_) for e in range(2)]
            f = j + kk - 1
            if ("x", f) not in seen:
                seen.add(("x", f)); r = XF(buf, f)
                cls = 0 if f == -1 else (2 if f == R else 1)
                Lr.append((f"ds_read_b128 v[{r}:{r+3}], v{AX(cls)} offset:{f*2048 if cls == 1 else 0}", n_))
        return Lr
    upd = ["s_add_u32 s33, s33, 1", "s_cmp_eq_u32 s33, 3", f"s_cselect_b32 s34, {(-2*SLOT) & 0xffffffff:#x}, s35", "s_cselect_b32 s33, 0, s33"] + [f"v_add_u32 v{r}, s34, v{r}" for r in ADDR]
    NE = min(22, 45 - bpos)
    WAITS = [-2, 2, 10, 23]
    need = [n_ for _, n_ in reads(0)]
    covered = lambda wi: 22 if wi == len(WAITS) - 1 else sum(1 for n_ in need if n_ <= WAITS[wi + 1])
    def step(buf):
        late = [t for t, _ in reads(buf)[NE:]]
        early = [t for t, _ in reads(buf ^ 1)[:NE]]
        misc = list(upd) + (["s_add_u32 s30, s30, 1", "s_cmp_lt_u32 s30, 7"] if buf else [])
        nr = NE
        for g, m in enumerate(chain([(buf, j, u) for j, u in tiles])):
            a(mf(*m))
            if g in WAITS:
                assert nr >= covered(WAITS.index(g))
                a(f"s_waitcnt lgkmcnt({nr - covered(WAITS.index(g))})")
            elif late: a(late.pop(0)); nr += 1
            elif g < bpos:
                if misc: a(misc.pop(0))
            elif g == bpos:
                assert not misc and g > WAITS[-1]
                a("s_barrier")
            elif early: a(early.pop(0))
            elif g == 46: a(f"s_waitcnt lgkmcnt({NE - covered(0)})")
            elif g == 47 and buf: a("s_cbranch_scc1 L_cloop")
    a("s_barrier")
    if stamps: a("s_memtime s[80:81]\ns_memrealtime s[64:65]")
    if probe: a("s_memrealtime s[72:73]")
    for t, _ in reads(0)[:NE]: a(t)
    a(f"s_waitcnt lgkmcnt({NE - covered(0)})")
    c("main loop: two stages per pass; the barrier publishes the next stage and frees the slot just read")
    a("L_cloop:")
    step(0)
    step(1)
    c("last two stages merged so that the row groups finish one after the other; sums go to LDS as they finish")
    seq = [(0, j, u) for j, u in tiles[:n1]]
    for g in range(4):
        u0 = g & 1
        for j, u in ((2*g, u0), (2*g+1, u0), (2*g+1, u0 ^ 1), (2*g, u0 ^ 1)):
            if (j, u) not in tiles[:n1]: seq.append((0, j, u))
            seq.append((1, j, u))
    fm = chain(seq)
    operands = lambda b, kk, u, j: {XF(b, j + kk - 1), WF(b, kk, u), WF(b, kk, u) + 2}
    dst = lambda text: int(text.split("v[")[1].split(":")[0])
    first_use = {}
    for g, m in enumerate(fm):
        for r in operands(*m): first_use.setdefault(r, g)
    r15 = [t for t, _ in reads(1)]
    for n_, r in enumerate(ADDR): r15 = [t.replace(f", v{r} ", f", v{AL+n_} ") for t in r15]
    pend = sorted([(first_use[dst(t)], 0, t) for t, _ in reads(0)[NE:]] + [(first_use[dst(t)], 1, t) for t in r15], key=lambda e: e[0])
    ops = [(dst(t), -2 - NE + n_) for n_, (t, _) in enumerate(reads(0)[:NE])]
    ncov = covered(0)
    bgap = 3 * n1 - bl
    wq = [((j, u), f"ds_write_b128 v{EW(u)}, v[{ACC(j,u)}:{ACC(j,u)+3}] offset:{j*4096}") for b, j, u in seq if b == 1]
    last_use = {}
    for g, m in enumerate(fm):
        for r in operands(*m): last_use[r] = g
    pfree = max(last_use[XF(0, f)] for f in (-1, 0, 1, 2)) + 1
    assert PS == XF(0, -1)
    Z0, OUT0 = XF(1, -1), 216
    zfree = max(last_use[XF(1, f)] for f in (-1, 0)) + 1
    ppend = list(prd); gpend = rd(0, 0); ep_done = False
    vq = []
    for t in row(0, 0, Z0, OUT0): vq.append(t)
    v_ok = False; g_last = None
    ninst = 0; done_inst = {}
    bar_done = False; nw = 0; lastw = -9
    ev = []
    e_done = 0
    for g, m in enumerate(fm):
        a(mf(*m)); ninst += 1
        if m[0] == 1 and g % 3 == 2: done_inst[(m[3], m[2])] = ninst
        nxt = operands(*fm[g + 1]) if g + 1 < len(fm) else set()
        unc = [n_ for n_, (r, _) in enumerate(ops) if n_ >= ncov and r in nxt]
        assert all(r in [o[0] for o in ops] for r in nxt), ("operand never read", g)
        ready = [e for e in pend if e[1] == 0 or bar_done]
        wrote = False
        if unc:
            cc = max(unc) + 1
            while cc < len(ops) and ops[cc][1] <= g - LAM: cc += 1
            if ops[max(unc)][1] > g - LAM: print("note: short read distance at gap", g, g - ops[max(unc)][1], file=sys.stderr)
            a(f"s_waitcnt lgkmcnt({min(15, len(ops) - cc)})"); ncov = cc
        elif wfirst and wq and wq[0][0] in done_inst and ninst - done_inst[wq[0][0]] >= 8 and g - lastw >= wsp:
            a(wq.pop(0)[1]); ops.append((None, g)); nw += 1; lastw = g
            if nw in (4, 12): ev.append([len(ops), 0])
        elif ev and ev[0][1] == 1:
            assert ep_done and not ppend
            a("s_barrier"); ev.pop(0); e_done += 1
        elif ev and ops[ev[0][0] - 1][1] <= g - 3 * sd:
            a(f"s_waitcnt lgkmcnt({len(ops) - ev[0][0]})"); ev[0][1] = 1; ncov = max(ncov, ev[0][0])
        elif e_done and gpend:
            assert g >= pfree
            a(gpend.pop(0)); ops.append((None, g)); g_last = len(ops)
        elif wq and wq[0][0] in done_inst and ninst - done_inst[wq[0][0]] >= 8 and g - lastw >= wsp:
            a(wq.pop(0)[1]); ops.append((None, g)); nw += 1; lastw = g
            if nw in (4, 12): ev.append([len(ops), 0])
        elif not bar_done and g >= bgap:
            a("s_barrier"); bar_done = True
        elif bar_done and not ep_done and g >= epg:
            a("s_barrier"); ep_done = True
        elif ready:
            pend.remove(ready[0]); a(ready[0][2]); ops.append((dst(ready[0][2]), g))
        elif ppend and ep_done and g >= pfree:
            a(ppend.pop(0)); ops.append((None, g))
        elif not v_ok and not gpend and not ppend and ops[g_last - 1][1] <= g - LAM + 1:
            assert g >= zfree
            a(f"s_waitcnt lgkmcnt({len(ops) - g_last})"); ncov = max(ncov, g_last); v_ok = True
        elif v_ok and len(vq) > 1 and vper:
            t = vq.pop(0)
            if isinstance(t, tuple):
                a(t[1][0])
                if vper == 2: a(t[1][1]); ninst += 1
                else: vq.insert(0, t[1][1])
            else:
                a(t)
                if vper == 2 and "cvt" in t and "cvt" in str(vq[0]): a(vq.pop(0)); ninst += 1
        elif nopf and wq and wq[0][0] in done_inst and nw in (2, 3):
            a("s_nop 1"); ninst += 1
        else:
            ninst -= 1
        ninst += 1
    assert not pend and bar_done and e_done == 2 and v_ok
    print("left of group 0 after the last MFMA:", len(vq), file=sys.stderr)
    if stamps: a("s_memtime s[82:83]\ns_memrealtime s[66:67]")
    if probe: a("s_memrealtime s[74:75]")
    rest = packed(vq)
    for key, t in wq:
        while 8 - (ninst - done_inst[key]) > 0:
            if len(rest) > 1: a(rest.pop(0)); ninst += 1
            else:
                gap = 8 - (ninst - done_inst[key]); a(f"s_nop {gap-1}"); ninst += gap
        a(t); ninst += 1
    c("row group 3: handed over through the waves' progress words (read ahead of the data, checked before use)")
    a(f"ds_write_b32 v{CF}, v{CV}")
    for t in rest: a(t)
    if cp2 is not None: a(f"s_setprio {cp2}")
    a(f"L_retry:\nds_read_b32 v{FV}, v{FA}")
    for t in rd(3, 80): a(t)
    a(f"s_waitcnt lgkmcnt(0)\nv_cmp_ne_u32 vcc, 1, v{FV}\ns_cbranch_vccnz L_retry")
    for t in packed(row(3, 80, 112, 120)): a(t)
    if probe and probe != "ka": spin(*{"zero": ("s70", "s70", 0), "pro": ("s70", "s72", 3), "main": ("s72", "s74", 1), "epi": ("s74", "s76", 3)}[probe], "b")
    if not stamps: a("s_endpgm")
    else:
        a("L_fin:\ns_barrier")
        if P:
            a("s_waitcnt vmcnt(0)\ns_cmp_lg_u32 s19, 64\ns_cbranch_scc1 L_end\nv_mov_b32 v30, 0")
            for r in range(2, 18): a(f"v_writelane_b32 v30, s{62+r}, {r}")
            a("""
            v_lshrrev_b32 v31, 20, v30
            v_and_b32 v30, 0xfffff, v30
            v_sub_u32 v31, v30, v31
            v_and_b32 v32, 63, v0
            s_lshl_b32 s26, s2, 8
            s_add_u32 s26, s26, 0x10000
            v_lshl_add_u32 v32, v32, 2, s26
            s_mov_b64 exec, 0xffffffff
            global_store_dword v32, v30, s[88:89]
            global_store_dword v32, v31, s[88:89] offset:128
            s_mov_b64 exec, -1
            """)
            stamp_end(a, extra=[], vbase=176)
        elif L:
            a("s_waitcnt vmcnt(0)\ns_barrier\ns_cmpk_lg_u32 s19, 64\ns_cbranch_scc1 L_end\ns_waitcnt lgkmcnt(0)")
            for r in (56, 58, 60, 62, 64): a(f"s_sub_u32 s{r}, s{r}, s92")
            stamp_end(a, extra=["s56", "s58", "s60", "s62", "s64"], vbase=176)
        elif E:
            a("s_memtime s[84:85]\ns_waitcnt vmcnt(0)\ns_barrier\ns_cmpk_lg_u32 s19, 0\ns_cbranch_scc1 L_end\ns_waitcnt lgkmcnt(0)")
            for r in (64, 66, 56, 58, 60, 62): a(f"s_sub_u32 s{r}, s84, s{r}")
            stamp_end(a, extra=["s64", "s66", "s56", "s58", "s60", "s62"], vbase=176)
        else:
            a("s_memtime s[84:85]\ns_waitcnt vmcnt(0)\ns_barrier\ns_cmpk_lg_u32 s19, 0x100\ns_cbranch_scc1 L_end\ns_waitcnt lgkmcnt(0)")
            a("s_sub_u32 s80, s80, s92\ns_sub_u32 s82, s82, s92\ns_sub_u32 s84, s84, s92\ns_sub_u32 s66, s66, s64\ns_sub_u32 s64, s64, s90")
            if stamps == "C": a("s_sub_u32 s68, s68, s92\ns_sub_u32 s70, s70, s92")
            stamp_end(a, extra=["s80", "s82", "s84", "s64", "s66"] + (["s68", "s70"] if stamps == "C" else []), vbase=176)
        a("L_end:\ns_endpgm")
    c("order of the c-stages after the first (4 bits each) per tile class: spreads the first touch of every L2 line over the CUs")
    a(".type L_tab,@object\nL_tab:")
    for t in T:
        p_ = sum(st << (4 * i) for i, st in enumerate(t[1:]))
        a(f".long {p_ & 0xffffffff:#010x}, {p_ >> 32:#010x}")
    a(".size L_tab, 64\nL_pad:")
    c("(unreachable) keeps the code read above and the instruction prefetcher's run-ahead inside this section")
    a(f".fill (8448 - (. - L_pc)) / 4, 4, 0xbf810000")
    ref = "standalone__batchnorm__prompt.s.ref"
    hdr = open(ref).read().split("; Override")[0] if os.path.exists(ref) else ""
    txt = "\n".join(l for l in a.text().split("\n") if l.strip()) + "\n"
    if rt:
        txt = txt.replace("s_memtime s[56:57]", "s_memrealtime s[56:57]").replace("s_memtime s[58:59]", "s_memrealtime s[58:59]").replace("s_sub_u32 s61, s56, s92", "s_sub_u32 s61, s56, s90\n    s_mul_i32 s61, s61, 10")
    return wrap(txt, 256, 512, LDS, vgpr=224, accum=224, header=hdr)

if __name__ == "__main__":
    import ast
    names = []
    for spec in sys.argv[1:]:
        name, _, kw = spec.partition(":")
        d = {}
        for item in filter(None, kw.split(",")):
            kk, v = item.split("=")
            try: v = ast.literal_eval(v.replace("_", ","))
            except Exception: v = v.replace("+", " ")
            d[kk] = v
        open(name + ".s", "w").write(gen(**d))
        names.append(name + ".s")
    print(" ".join(names))
```

```python
import sys, os
from asmlib import *

SLOT = 41216
WOFF = 130 * 128
NS = 3
PLANE = SLOT
PARM = NS * SLOT
PLANE1 = PARM + 512
FLAG = PLANE1 + 32768
LDS = FLAG + 1024
HAND = PLANE1 + 24576

def build(first, touch):
    when = {st: 0 for st in first}
    for slot, q, st in touch: when[st] = slot
    assert sorted(when) == list(range(16))
    T = []
    for q in range(4):
        mine = {slot: st for slot, qq, st in touch if qq == q}
        mine[0] = first[q]
        order = []
        for slot in range(16):
            if slot in mine: pick = mine[slot]
            else: pick = min((st for st in range(16) if st not in order and st not in mine.values() and when[st] < slot), key=lambda st: (when[st], st))
            order.append(pick)
        assert sorted(order) == list(range(16))
        T.append(order)
    return T

def gen(stamps=False, nto="sc0 sc1 nt", k0=8, k=8, prio=3, bpos=29, sd=3, n1=10, LAM=7, bl=19, ahead=2,
        lprio=0, cpf=1, vper=2, nopf=1, cp2=0, wsp=3, epg=37, wfirst=0, ntm=15, perm='x456708123fa9cbed', aodd=None, we=0, wsr=None, wsp_='', col=None, po='wwwxxxxWWW', fl=0, rt=0, sched='l2q', xsw=7, wb_=5, pw=0, probe=None, lw=0, xw=0, xv=0, dw=16, sfirst=0, nopc=0, hop=0, one=1, rgap=0, wsp2=3, sd2=3, pafter=0, b64=0):
    a = Asm()
    c = lambda t: a.l.append("    ; " + t)
    P = stamps == "P"
    L = stamps == "L"
    tail = lambda s0, q0, ah=ahead: [(s - ah, (s - s0 + q0) & 3, s) for s in range(s0, 16)]
    swp = lambda T_, pm: T_ + [[pm.get(st, st) for st in t] for t in T_]
    sw02 = {0: 2, 1: 3, 2: 0, 3: 1}
    T = {"l4": lambda: swp(build([0,1,2,3], tail(4, 0)), {}),
         "l2p": lambda: swp(build([0,1,0,1], [(1, 0, 2), (1, 1, 3), (2, 2, 4), (2, 3, 5)] + tail(6, 0)), sw02),
         "l2q": lambda: swp(build([0,1,0,1], [(1, 0, 2), (1, 1, 3), (2, 2, 4), (3, 3, 5)] + tail(6, 0)), sw02),
         "l2s": lambda: swp(build([0,1,0,1], [(1, 0, 2), (2, 1, 3), (2, 2, 4), (3, 3, 5)] + tail(6, 0)), sw02),
         "l2v": lambda: swp(build([0,1,0,1], [(1, 0, 2), (1, 1, 3)] + tail(4, 2)), sw02),
         "l2w": lambda: swp(build([0,1,0,1], [(1, 0, 2), (2, 1, 3)] + tail(4, 2)), sw02),
         "l2x": lambda: swp(build([0,1,0,1], [(2, 0, 2), (2, 1, 3), (2, 2, 2), (2, 3, 3)] + tail(4, 2)), sw02),
         "l2y": lambda: swp(build([0,1,0,1], [(1, 0, 2), (2, 1, 3)] + tail(4, 2)), {**sw02, 4: 6, 5: 7, 6: 4, 7: 5}),
         "l2z": lambda: swp(build([0,1,0,1], [(1, 0, 2), (2, 1, 3), (3, 2, 4), (4, 3, 5), (5, 0, 6), (6, 1, 7), (7, 0, 8), (8, 1, 9), (9, 2, 10), (10, 3, 11), (11, 2, 12), (12, 3, 13), (13, 0, 14), (14, 1, 15)]), {st: st ^ 2 for st in range(12)}),
         "l2t": lambda: swp(build([0,1,0,1], [(1, 0, 2), (1, 1, 3), (2, 2, 4), (3, 3, 5)] + tail(6, 0)), {**sw02, 4: 8, 5: 9, 6: 10, 7: 11, 8: 4, 9: 5, 10: 6, 11: 7}),
         "l2u": lambda: swp(build([0,1,0,1], [(1, 0, 2), (1, 1, 3), (2, 2, 4), (3, 3, 5)] + tail(6, 0)), {**sw02, 8: 12, 9: 13, 10: 14, 11: 15, 12: 8, 13: 9, 14: 10, 15: 11}),
         "l1c": lambda: swp(build([0,0,0,0], [(1, 2, 1), (1, 3, 1), (1, 0, 2), (1, 1, 3), (3, 2, 4), (3, 3, 5), (4, 2, 6), (5, 3, 7)] + tail(8, 0)), {0: 1, 1: 0, 2: 4, 3: 5, 4: 2, 5: 3}),
         "l1d": lambda: swp(build([0,0,0,0], [(1, 0, 1), (1, 1, 1), (1, 2, 1), (1, 3, 1), (2, 0, 2), (2, 1, 3), (2, 2, 2), (2, 3, 3), (3, 0, 4), (3, 1, 5), (4, 2, 6), (5, 3, 7)] + tail(8, 0)), {0: 1, 1: 0, 2: 4, 3: 5, 4: 2, 5: 3}),
         }[sched]()
    if perm: T = [[int(perm[1:][st], 16) for st in t] for t in T]
    if stamps: stamp_begin(a); a("s_load_dwordx2 s[88:89], s[0:1], 64")
    if probe: a("s_memrealtime s[70:71]")
    c("---- entry: s[36:51] = x, w, mean, var, g, b, out, dbg.  XCD (wg & 7) owns 8 x 4 tiles of 128 rows x 64 columns")
    a("""
    s_load_dwordx16 s[36:51], s[0:1], 0
    v_readfirstlane_b32 s19, v0
    s_cmpk_ge_u32 s2, 0x100
    s_cbranch_scc1 L_end
    s_lshr_b32 s20, s2, 3
    s_and_b32 s21, s20, 7
    s_and_b32 s22, s2, 4
    s_lshl1_add_u32 s23, s22, s21
    s_and_b32 s24, s2, 3
    s_lshr_b32 s25, s2, 6
    s_lshl2_add_u32 s24, s24, s25
    s_lshl_b32 s23, s23, 18
    s_lshl_b32 s24, s24, 7
    """)
    if not nopc: a("s_getpc_b64 s[16:17]")
    a("L_pc:\ns_cmpk_ge_u32 s19, 0x100")
    c("s23 = row tile * 128 * 2048 B, s24 = column tile * 128 B, s19 = first thread id of the wave")
    if nopc == 1:
        a("s_cbranch_scc1 L_cons")
    elif nopc == 2:
        c("waves 4-7 leave for their code only once the pointers are here (their fetch miss must not delay the loaders' fetches)")
        a("s_cbranch_scc0 L_load\ns_waitcnt lgkmcnt(0)\ns_branch L_cons\nL_load:")
    else:
        a("s_cbranch_scc0 L_load")
        c("waves 4-7 (MFMA waves): read 64 B of this kernel's code each, so that it is in L2 before it is fetched")
        CPF = {1: "s_load_dword s3, s[16:17], s26\ns_waitcnt lgkmcnt(0)",
               2: "s_waitcnt lgkmcnt(0)\ns_load_dword s3, s[16:17], s26\ns_waitcnt lgkmcnt(0)",
               3: "v_mov_b32 v1, s26\nglobal_load_dword v2, v1, s[16:17]\ns_waitcnt vmcnt(0) lgkmcnt(0)",
               0: "s_waitcnt lgkmcnt(0)"}[cpf]
        a(f"""
        s_lshl_b32 s26, s20, 8
        s_add_u32 s26, s26, s19
        {CPF}
        s_branch L_cons
        L_load:
        """)
    K = sum(t[0] << (4 * i) for i, t in enumerate(T))
    TAB = f"s_lshl2_add_u32 s26, s2, s22\ns_and_b32 s26, s26, 4\ns_or_b32 s29, s29, s26\ns_lshl_b32 s26, s29, 2\ns_lshr_b32 s31, {K:#x}, s26\ns_and_b32 s31, s31, 15\ns_lshl3_add_u32 s29, s29, L_tab-L_pc"
    if nopc:
        pk = [sum(st << (4 * i) for i, st in enumerate(t)) for t in T]
        lo = [p_ & 0xffffffff for p_ in pk]; hi = [p_ >> 32 for p_ in pk]
        assert hi[:4] == hi[4:]
        dx = [lo[q] ^ lo[q + 4] for q in range(4)]
        TAB = f"s_mov_b32 s54, {lo[0]:#x}\ns_mov_b32 s55, {hi[0]:#x}\n"
        for q in range(1, 4): TAB += f"s_cmp_ge_u32 s29, {q}\ns_cselect_b32 s54, {lo[q]:#x}, s54\ns_cselect_b32 s55, {hi[q]:#x}, s55\n"
        for q in range(4): assert dx[q] == ((lo[q] & ~(lo[q] >> 1) & 0x44444444) >> 1)
        TAB += "s_lshl2_add_u32 s26, s2, s22\ns_bitcmp1_b32 s26, 2\ns_cselect_b32 s26, 0x44444444, 0\ns_and_b32 s26, s26, s54\ns_lshr_b32 s27, s54, 1\ns_andn2_b32 s26, s26, s27\ns_lshr_b32 s26, s26, 1\ns_xor_b32 s54, s54, s26"
    c("---- waves 0-3: LDS-DMA loaders.  v5/v6: x pieces, v7/v8: W pieces (own / partner half), v9: halo rows")
    a(f"""
    v_bfe_u32 v2, v0, 3, 3
    v_and_b32 v3, 7, v0
    v_lshrrev_b32 v4, 1, v2
    v_xor_b32 v5, v3, v4
    s_lshl_b32 s12, s19, 6
    s_add_u32 s26, s12, s23
    v_lshl_add_u32 v5, v5, 4, s26
    v_lshl_add_u32 v5, v2, 14, v5
    {f"s_bitcmp1_b32 s2, {xsw}" if xsw else "s_cmp_lg_u32 s2, s2"}
    s_cselect_b32 s26, 0x20040, 0
    v_xor_b32 v5, s26, v5
    v_xor_b32 v6, 0x20040, v5
    s_lshr_b32 s26, s26, 7
    s_add_u32 s12, s12, s26
    v_and_b32 v4, 2, v2
    v_xor_b32 v7, v4, v3
    s_lshl_b32 s26, s19, 9
    s_add_u32 s26, s26, s24
    v_lshl_add_u32 v7, v7, 4, s26
    v_lshl_add_u32 v7, v2, 11, v7
    s_lshr_b32 s14, s19, 5
    s_bitcmp1_b32 s2, {wb_}
    s_cselect_b32 s26, 0x4040, 0
    s_addc_u32 s14, s14, 0
    v_xor_b32 v7, s26, v7
    v_xor_b32 v8, 0x4040, v7
    s_xor_b32 s15, s14, 1
    s_mulk_i32 s14, 3072
    s_mulk_i32 s15, 3072
    s_addk_i32 s14, {WOFF}
    s_addk_i32 s15, {WOFF}
    v_mul_u32_u24 v9, 7, v2
    v_xor_b32 v9, v9, v3
    s_add_u32 s26, s23, 0x40000
    v_lshl_add_u32 v9, v9, 4, s26
    v_mul_u32_u24 v4, 0x40800, v2
    v_sub_u32 v9, v9, v4
    s_add_u32 s29, s21, s25
    s_and_b32 s29, s29, 3
    {TAB}
    s_lshl_b32 s6, 1, 22
    s_lshl_b32 s7, 1, 17
    s_lshl_b32 s10, 3, 21
    s_mov_b32 s11, s7
    v_cmp_gt_u32 vcc, 64, v0
    v_and_b32 v16, 63, v0
    v_lshl_add_u32 v10, v16, 1, s24
    s_mov_b32 s30, 0
    s_mov_b32 s33, 0
    {"s_memtime s[56:57]" if L else ""}
    s_waitcnt lgkmcnt(0)
    {"s_memtime s[58:59]" if L else ""}
    {"s_memrealtime s[72:73]" if probe in ("ka", "iss", "f9", "f7", "f5", "f0") else ""}
    {"" if nopc else "s_load_dwordx2 s[54:55], s[16:17], s29"}
    """)
    c("one pass = one c-stage s31; s[54:55] = the stages still to come, s30 = pass, s33 = ring slot offset")
    a("L_adv:")
    if nopc: a("s_and_b32 s31, s54, 15")
    a("s_lshl_b32 s32, s31, 17")
    X, W = "s[4:7]", "s[8:11]"
    xp = [(["s12", "s13"][n >> 1], f"buffer_load_dwordx4 v{5 + (n >> 1)}, {X}, s31 offen offset:{(n & 1)*2048} lds") for n in range(4)]
    wa = [("s14", f"buffer_load_dwordx4 v7, {W}, s{[32,34,35][t]} offen offset:{t*1024} lds") for t in range(3)]
    wb = [("s15", f"buffer_load_dwordx4 v8, {W}, s{[32,34,35][t]} offen offset:{t*1024} lds") for t in range(3)]
    pieces = wa + xp + wb
    rec = "s_sub_u32 s60, s56, s58\ns_min_u32 s60, s60, 0xfff\ns_lshl_b32 s60, s60, 20\ns_sub_u32 s61, s56, s92\ns_or_b32 s60, s60, s61\n"
    def bar(n, cond):
        c("previous stage landed (wave 0 has one more load in flight: the halo) -> publish it")
        a(f"""
        {cond}
        s_cbranch_scc0 L_nb{n}
        """)
        if L and n == k0 and not lw: a("s_cmp_lg_u32 s30, 1\ns_cbranch_scc1 L_st0\ns_memtime s[62:63]\nL_st0:")
        a(f"""
        s_waitcnt vmcnt({n+1})
        s_cbranch_vccnz L_b{n}
        s_waitcnt vmcnt({n})
        L_b{n}:
        """)
        if P: a("s_waitcnt lgkmcnt(0)\n" + rec + "s_mov_b32 s61, m0\ns_mov_b32 m0, s30\ns_nop 0\ns_movreld_b32 s62, s60\ns_mov_b32 m0, s61\ns_memtime s[58:59]")
        if L and n == k0 and not lw: a("s_cmp_lg_u32 s30, 1\ns_cbranch_scc1 L_st1\ns_memtime s[64:65]\nL_st1:")
        a("s_barrier")
        if P: a("s_memtime s[56:57]")
        a(f"L_nb{n}:")
    LW = "s_waitcnt vmcnt(9); s_memtime s[62:63]; s_waitcnt vmcnt(7); s_memtime s[64:65]; s_waitcnt vmcnt(5); s_memtime s[66:67]; s_waitcnt vmcnt(0); s_memtime s[68:69]; " if lw else ""
    assert SLOT == 0xa100 and NS == 3
    assert min(k0, k) > 3
    fill = {0: "s_mov_b64 s[8:9], s[38:39]", 3: "s_mov_b64 exec, -1", 5: "s_lshr_b64 s[54:55], s[54:55], 4" if nopc else "s_nop 0", 7: f"s_add_u32 s13, s33, {SLOT}"}
    for n in range(11):
        if n == k0 and k0 == k: bar(n, "s_cmp_ge_u32 s30, 1")
        elif n == k0: bar(n, "s_cmp_eq_u32 s30, 1")
        elif n == k: bar(n, "s_cmp_ge_u32 s30, 2")
        if n == 10: break
        if n == 1: a(f"s_add_u32 s34, s32, {0x200000-1024}\ns_lshl_b32 s31, s31, 7")
        if n == 2: a(f"s_add_u32 s35, s32, {0x400000-2048}\ns_mov_b64 s[4:5], s[36:37]")
        if n == 3:
            a(f"""
            s_cbranch_vccz L_nh
            s_add_u32 m0, s33, 16384
            s_mov_b64 exec, 0xffff
            buffer_load_dwordx4 v9, {X}, s31 offen lds
            L_nh:
            """)
        m, ins = pieces[n]
        if n == 5: a(f"s_xor_b32 m0, m0, 0x400\n{fill[n]}")
        elif n in fill: a(f"s_add_u32 m0, s33, {m}\n{fill[n]}")
        a(ins)
    a(f"""
    s_bitcmp1_b32 s33, 16
    s_cselect_b32 s33, 0, s13
    s_add_u32 s30, s30, 1
    {f"s_cmp_lg_u32 s30, 1; s_cbranch_scc1 L_np; s_waitcnt vmcnt({probe[1] if probe[0] == 'f' else 63}); s_memrealtime s[74:75]; L_np:".replace("; ", chr(10)) if probe in ("iss", "f9", "f7", "f5", "f0") else ""}
    {f"s_cmp_lg_u32 s30, 1; s_cbranch_scc1 L_nt; s_memtime s[60:61]; {LW}L_nt:".replace("; ", chr(10)) if L else ""}
    {"" if nopc else "s_waitcnt lgkmcnt(0); s_and_b32 s31, s54, 15; s_lshr_b64 s[54:55], s[54:55], 4".replace("; ", chr(10))}
    s_cmp_lt_u32 s30, 16
    s_cbranch_scc1 L_adv
    """)
    ER, ER1, PA, O0, FA, FV = 208, 210, 212, 213, 214, 215
    if one:
        assert not P
        a("s_mov_b32 s26, 0xbfb8aa3b\ns_cbranch_vccnz L_par\ns_waitcnt vmcnt(0)\ns_barrier\ns_branch L_ep\nL_par:")
    c("---- behind the last stage: BN parameters of the tile's 64 columns (L2 hits by now)")
    a(f"""
    global_load_ushort v12, v10, s[40:41]
    global_load_ushort v13, v10, s[42:43]
    global_load_ushort v14, v10, s[44:45]
    global_load_ushort v15, v10, s[46:47]
    s_waitcnt vmcnt(4)
    """)
    if P: a("s_waitcnt lgkmcnt(0)\n" + rec + "s_mov_b32 s78, s60\ns_memtime s[58:59]")
    a("s_barrier")
    if P: a("s_memtime s[56:57]\ns_waitcnt lgkmcnt(0)\n" + rec + "s_mov_b32 s79, s60")
    if stamps == "E": a("s_memtime s[64:65]")
    def epi_addr():
        a(f"""
        v_lshlrev_b32 v4, 1, v3
        v_xor_b32 v4, v4, v2
        s_and_b32 s26, s19, 0xc0
        s_lshl_b32 s26, s26, 5
        s_add_u32 s26, s26, {PLANE}
        v_lshl_add_u32 v4, v4, 4, s26
        v_lshl_add_u32 v{ER}, v2, 8, v4
        v_xor_b32 v{ER+1}, 16, v{ER}
        v_add_u32 v{ER1}, {PLANE1-PLANE}, v{ER}
        v_add_u32 v{ER1+1}, {PLANE1-PLANE}, v{ER+1}
        v_lshlrev_b32 v4, 5, v3
        v_add_u32 v{PA}, {PARM}, v4
        v_and_b32 v4, 3, v2
        v_lshrrev_b32 v1, 2, v2
        v_lshl_add_u32 v1, v4, 1, v1
        s_bitcmp1_b32 s19, 6
        s_cselect_b32 s27, 9, 0
        v_xor_b32 v1, s27, v1
        s_and_b32 s26, s19, 0x80
        s_lshl_b32 s26, s26, 4
        s_add_u32 s26, s26, s23
        s_add_u32 s26, s26, s24
        v_lshl_add_u32 v4, v3, 4, s26
        v_lshl_add_u32 v{O0}, v1, 14, v4
        s_mov_b32 s50, 0x400000
        s_mov_b32 s51, 0x20000
        s_mov_b32 s26, 0xbfb8aa3b
        s_movk_i32 s29, 0x3000
        v_lshlrev_b32 v4, 4, v0
        v_add_u32 v4, {HAND-4096}, v4
        ds_write_b128 v4, v[{ER}:{ER+3}]
        ds_write_b64 v4, v[{PA}:{PA+1}] offset:4096
        """)
    PS, PT = 64, 72
    prd = [f"ds_read_b128 v[{PS}:{PS+3}], v{PA}", f"ds_read_b128 v[{PT}:{PT+3}], v{PA} offset:256", f"ds_read_b128 v[{PS+4}:{PS+7}], v{PA} offset:16", f"ds_read_b128 v[{PT+4}:{PT+7}], v{PA} offset:272"]
    def rd(g, y):
        return [f"ds_read_b128 v[{y+8*pl+4*e}:{y+8*pl+4*e+3}], v{(ER1 if pl else ER)+e} offset:{g*8192}" for e in range(2) for pl in range(2)]
    def row(g, y, z, o):
        p = y + 8
        pr = lambda r: f"v[{r}:{r+1}]"
        A = [(f"v_pk_add_f32 {pr(y+2*n)}, {pr(y+2*n)}, {pr(p+2*n)}", [f"v_add_f32 v{y+m}, v{y+m}, v{p+m}" for m in (2*n, 2*n+1)]) for n in range(4)]
        B = [(f"v_pk_fma_f32 {pr(y+2*n)}, {pr(y+2*n)}, {pr(PS+2*n)}, {pr(PT+2*n)}", [f"v_fma_f32 v{y+m}, v{y+m}, v{PS+m}, v{PT+m}" for m in (2*n, 2*n+1)]) for n in range(4)]
        C = [(f"v_pk_fma_f32 {pr(z+2*n)}, {pr(z+2*n)}, s[26:27], s[26:27] op_sel_hi:[1,0,0]", [f"v_fma_f32 v{z+m}, v{z+m}, s26, s26" for m in (2*n, 2*n+1)]) for n in range(4)]
        M = [(f"v_pk_mul_f32 {pr(y+2*n)}, {pr(y+2*n)}, {pr(z+2*n)}", [f"v_mul_f32 v{y+m}, v{y+m}, v{z+m}" for m in (2*n, 2*n+1)]) for n in range(4)]
        E_ = [f"v_exp_f32 v{z+n}, v{y+n}" for n in range(8)]
        Rr = [f"v_rcp_f32 v{z+n}, v{z+n}" for n in range(8)]
        V = [f"v_cvt_pk_bf16_f32 v{o+n}, v{y+2*n}, v{y+2*n+1}" for n in range(4)]
        S = f"buffer_store_dwordx4 v[{o}:{o+3}], v{O0}, s[48:51], {['0', 's27', 's28', 's29'][g]} offen {nto if ntm >> g & 1 else nto.replace(' nt', '')}"
        return [A[0], A[1], B[0], A[2], B[1], E_[0], A[3], E_[1], B[2], E_[2], B[3], E_[3], C[0], E_[4], E_[5], C[1], E_[6], E_[7], C[2], Rr[0], Rr[1], C[3], Rr[2], Rr[3], M[0], Rr[4], Rr[5], M[1], Rr[6], V[0], Rr[7], M[2], V[1], M[3], V[2], V[3], S]
    packed = lambda L_: [t[0] if isinstance(t, tuple) else t for t in L_]
    a(f"s_mov_b32 s26, {PARM}\nv_lshl_add_u32 v17, v16, 2, s26\ns_mov_b32 s26, 0xbfb8aa3b")
    c("scale' = -log2(e) * g / sqrt(var + eps), shift' = -log2(e) * (b - mean * g / sqrt(var + eps))")
    a(f"""
    s_waitcnt vmcnt(0)
    v_lshlrev_b32 v13, 16, v13
    v_add_f32 v13, 0x3727c5ac, v13
    v_rsq_f32 v13, v13
    v_lshlrev_b32 v12, 16, v12
    v_lshlrev_b32 v14, 16, v14
    v_lshlrev_b32 v15, 16, v15
    v_mul_f32 v13, v13, v14
    v_fma_f32 v15, -v12, v13, v15
    v_mul_f32 v13, s26, v13
    v_mul_f32 v15, s26, v15
    ds_write_b32 v17, v13
    ds_write_b32 v17, v15 offset:256
    """)
    E = stamps == "E"
    a("s_waitcnt lgkmcnt(0)\nL_ep:\ns_barrier")
    c("epilogue addresses, left in LDS by the MFMA waves")
    a(f"""
    s_mov_b32 s27, {HAND}
    v_lshl_add_u32 v11, v0, 4, s27
    ds_read_b64 v[{PA}:{PA+1}], v11 offset:4096
    ds_read_b128 v[{ER}:{ER+3}], v11
    s_mov_b32 s50, 0x400000
    s_mov_b32 s51, 0x20000
    s_movk_i32 s27, 0x1000
    s_movk_i32 s28, 0x2000
    """)
    if lprio: a(f"s_setprio {lprio}")
    c("row group 0 published (finished by the MFMA waves), then groups 1 and 2 (finished here)")
    a("s_barrier")
    if E: a("s_memtime s[66:67]")
    a("s_waitcnt lgkmcnt(0)")
    for t in prd: a(t)
    a("s_barrier")
    if E: a("s_memtime s[56:57]")
    for t in rd(1, 80) + rd(2, 96): a(t)
    if lprio: a("s_setprio 0")
    a("s_waitcnt lgkmcnt(0)")
    if E: a("s_memtime s[58:59]")
    for t in packed(row(1, 80, 112, 128)): a(t)
    if E: a("s_memtime s[60:61]")
    for t in packed(row(2, 96, 120, 132))[(-1 if xv else 0):]: a(t)
    if E: a("s_memtime s[62:63]")

    def spin(lo, hi, sh, tag):
        a(f"""
        s_waitcnt vmcnt(0)
        s_memrealtime s[76:77]
        s_waitcnt lgkmcnt(0)
        s_sub_u32 s78, {hi}, {lo}
        s_lshl_b32 s78, s78, {sh}
        s_min_u32 s78, s78, 20000
        L_probe{tag}:
        s_memrealtime s[60:61]
        s_waitcnt lgkmcnt(0)
        s_sub_u32 s62, s60, s76
        s_cmp_lt_u32 s62, s78
        s_cbranch_scc1 L_probe{tag}
        """)
    if probe == "ka": spin("s70", "s72", 4, "a")
    if probe in ("iss", "f9", "f7", "f5", "f0"):
        a("s_cmp_lg_u32 s19, 64\ns_cbranch_scc1 L_end\ns_cmp_lg_u32 s20, 9\ns_cbranch_scc1 L_end")
        spin("s72", "s74", 4, "a")
    if wsr is not None:
        a(f"""
        s_load_dwordx2 s[44:45], s[0:1], 64
        s_mov_b32 s46, 0x10000000
        s_mov_b32 s47, 0x20000
        v_lshlrev_b32 v1, 7, v0
        s_lshl_b32 s48, s2, 17
        s_add_u32 s48, s48, {wsr << 20}
        s_waitcnt lgkmcnt(0)
        """)
        for i in range(4): a(f"buffer_load_dword v2, v1, s[44:47], s48 offen {wsp_}\ns_add_u32 s48, s48, 0x8000")
        a("s_waitcnt vmcnt(0)")
    a("s_branch L_fin" if stamps else "L_end:\ns_endpgm")
    R = 8
    ACC = lambda j, u: (j * 2 + u) * 4
    XF = lambda buf, j: 64 + buf * 64 + (j + 1) * 4
    WF = lambda buf, kk, u: 64 + buf * 64 + 40 + (kk * 2 + u) * 4
    AX = lambda cls: 192 + cls
    AW = lambda u: 195 + u
    EW = lambda u: 197 + u
    ADDR = list(range(192, 197))
    AL, CF, CV = 199, 204, 205
    c("(unreachable) puts the main loop head on a 32-byte boundary")
    a(f".fill (((32 - ((. - {KNAME} + L_cloop - L_cons) & 31)) & 31) / 4), 4, 0xbf810000")
    a("L_cons:")
    if stamps == "C": a("s_memtime s[68:69]")
    if nopc == 1: a("s_waitcnt lgkmcnt(0)")
    c("---- waves 4-7: wave (kh, nh) accumulates 128 rows x 32 columns over c-half kh of every stage")
    if hop:
        c("three of the waves jump ahead and straight back: the fetch pulls those parts of the code into the instruction cache early")
        a("s_mov_b64 vcc, -1\ns_cmpk_eq_u32 s19, 0x140\ns_cbranch_scc1 L_hop1\ns_cmpk_eq_u32 s19, 0x180\ns_cbranch_scc1 L_hop2\ns_cmpk_eq_u32 s19, 0x1c0\ns_cbranch_scc1 L_hop3\nL_hopb:\ns_mov_b64 vcc, 0")
    c("touch the BN parameter lines so that the epilogue's loads hit L2")
    if pw:
        for r in (40, 42, 44, 46):
            a(f"s_load_dword s3, s[{r}:{r+1}], s24\ns_load_dword s3, s[{r}:{r+1}], s24 offset:64")
    else:
        a("""
        s_bitcmp1_b32 s19, 6
        s_cselect_b64 s[4:5], s[42:43], s[40:41]
        s_cselect_b64 s[6:7], s[46:47], s[44:45]
        s_bitcmp1_b32 s19, 7
        s_cselect_b64 s[4:5], s[6:7], s[4:5]
        s_load_dword s3, s[4:5], s24
        s_load_dword s3, s[4:5], s24 offset:64
        """)
    if prio: a(f"s_setprio {prio}")
    c("lane (i, G): tile j holds row 8*pi(i)+j; x fragment f = rows 8*pi+f (f = -1..8) serves tap k of tile j = f-k+1")
    a(f"""
    v_and_b32 v10, 15, v0
    v_bfe_u32 v11, v0, 4, 2
    v_lshrrev_b32 v1, 2, v10
    v_lshrrev_b32 v2, 3, v10
    v_xor_b32 v1, v1, v2
    v_and_b32 v1, 1, v1
    v_and_b32 v2, 3, v10
    v_lshl_add_u32 v1, v2, 1, v1
    v_and_or_b32 v1, v10, 8, v1
    v_bfe_u32 v12, v0, 7, 1
    v_bfe_u32 v13, v0, 6, 1
    v_lshl_add_u32 v2, v12, 2, v11
    v_lshrrev_b32 v4, 1, v1
    v_xor_b32 v4, v4, v2
    v_lshlrev_b32 v4, 4, v4
    v_lshl_add_u32 v{AX(1)}, v1, 7, v4
    v_add_u32 v3, -1, v1
    v_bfe_u32 v4, v3, 1, 3
    v_xor_b32 v4, v4, v2
    v_lshlrev_b32 v4, 4, v4
    v_ashrrev_i32 v5, 31, v3
    v_and_b32 v5, 18, v5
    v_add_u32 v3, 0x70, v3
    v_add_u32 v3, v3, v5
    v_lshl_add_u32 v{AX(0)}, v3, 7, v4
    v_add_u32 v3, 1, v1
    v_bfe_u32 v4, v3, 1, 3
    v_xor_b32 v4, v4, v2
    v_lshlrev_b32 v4, 4, v4
    v_and_b32 v5, 16, v3
    v_and_b32 v3, 15, v3
    v_lshl_add_u32 v3, v5, 3, v3
    v_lshl_add_u32 v{AX(2)}, v3, 7, v4
    v_mul_u32_u24 v2, 3072, v2
    v_bfe_u32 v4, v0, 2, 2
    v_lshl_add_u32 v2, v4, 7, v2
    v_and_b32 v5, 3, v0
    v_lshl_add_u32 v2, v5, 3, v2
    v_and_b32 v3, 1, v11
    v_xor_b32 v3, v3, v13
    v_lshrrev_b32 v4, 1, v4
    v_lshl_add_u32 v3, v3, 1, v4
    v_lshl_add_u32 v2, v3, 5, v2
    v_add_u32 v{AW(0)}, {WOFF}, v2
    v_xor_b32 v{AW(1)}, 32, v{AW(0)}
    v_lshl_add_u32 v2, v13, 3, v11
    v_and_b32 v3, 7, v10
    v_xor_b32 v2, v2, v3
    v_lshlrev_b32 v2, 4, v2
    v_lshl_add_u32 v2, v10, 8, v2
    v_mul_u32_u24 v3, {PLANE1-PLANE}, v12
    v_add_u32 v2, v2, v3
    v_add_u32 v{EW(0)}, {PLANE}, v2
    v_xor_b32 v{EW(1)}, 64, v{EW(0)}
    v_lshlrev_b32 v2, 2, v0
    v_add_u32 v{CF}, {FLAG-1024}, v2
    v_mov_b32 v{CV}, 1
    v_and_b32 v4, 3, v0
    v_mul_u32_u24 v4, 0x104, v4
    v_add_u32 v{FA}, {FLAG}, v4
    v_bfe_u32 v2, v0, 3, 3
    v_and_b32 v3, 7, v0
    """)
    epi_addr()
    for n_, r in enumerate(ADDR): a(f"v_mov_b32 v{AL+n_}, v{r}")
    for r in range(0, 64, 2): a(f"v_mov_b64 v[{r}:{r+1}], 0")
    a(f"ds_write_b32 v{CF}, v0\ns_mov_b32 s30, 0\ns_mov_b32 s33, 0\ns_mov_b32 s35, {SLOT}")
    if pw: a("s_waitcnt lgkmcnt(0)")
    if stamps == "C": a("s_memtime s[70:71]")
    tiles = [(j, 0) for j in range(4)] + [(j, 1) for j in range(4)] + [(j, 1) for j in range(4, 8)] + [(j, 0) for j in range(4, 8)]
    def chain(seq):
        out = []
        for n_, (b, j, u) in enumerate(seq): out += [(b, kk, u, j) for kk in ((2, 1, 0) if n_ & 1 else (0, 1, 2))]
        return out
    def mf(b, kk, u, j):
        return f"v_mfma_f32_16x16x32_bf16 v[{ACC(j,u)}:{ACC(j,u)+3}], v[{WF(b,kk,u)}:{WF(b,kk,u)+3}], v[{XF(b,j+kk-1)}:{XF(b,j+kk-1)+3}], v[{ACC(j,u)}:{ACC(j,u)+3}]"
    def reads(buf):
        Lr = []; seen = set()
        for n_, (_, kk, u, j) in enumerate(chain([(buf, j, u) for j, u in tiles])):
            if ("w", kk, u) not in seen:
                seen.add(("w", kk, u)); r = WF(buf, kk, u)
                Lr += [(f"ds_read_b64_tr_b16 v[{r+2*e}:{r+2*e+1}], v{AW(u)} offset:{kk*1024 + e*512}", n_) for e in range(2)]
            f = j + kk - 1
            if ("x", f) not in seen:
                seen.add(("x", f)); r = XF(buf, f)
                cls = 0 if f == -1 else (2 if f == R else 1)
                Lr.append((f"ds_read_b128 v[{r}:{r+3}], v{AX(cls)} offset:{f*2048 if cls == 1 else 0}", n_))
        return Lr
    upd = ["s_add_u32 s33, s33, 1", "s_cmp_eq_u32 s33, 3", f"s_cselect_b32 s34, {(-2*SLOT) & 0xffffffff:#x}, s35", "s_cselect_b32 s33, 0, s33"] + [f"v_add_u32 v{r}, s34, v{r}" for r in ADDR]
    NE = min(22, 45 - bpos)
    WAITS = [-2, 2, 10, 23]
    need = [n_ for _, n_ in reads(0)]
    covered = lambda wi: 22 if wi == len(WAITS) - 1 else sum(1 for n_ in need if n_ <= WAITS[wi + 1])
    def step(buf):
        late = [t for t, _ in reads(buf)[NE:]]
        early = [t for t, _ in reads(buf ^ 1)[:NE]]
        misc = list(upd) + (["s_add_u32 s30, s30, 1", "s_cmp_lt_u32 s30, 7"] if buf else [])
        nr = NE
        for g, m in enumerate(chain([(buf, j, u) for j, u in tiles])):
            a(mf(*m))
            if g in WAITS:
                assert nr >= covered(WAITS.index(g))
                a(f"s_waitcnt lgkmcnt({nr - covered(WAITS.index(g))})")
            elif late: a(late.pop(0)); nr += 1
            elif g < bpos:
                if misc: a(misc.pop(0))
                elif hop and buf == 0 and g == 26: a("L_hop1:\ns_cbranch_vccnz L_hopb")
            elif g == bpos:
                assert not misc and g > WAITS[-1]
                a("s_barrier")
            elif early: a(early.pop(0))
            elif g == 46: a(f"s_waitcnt lgkmcnt({NE - covered(0)})")
            elif g == 47 and buf: a("s_cbranch_scc1 L_cloop")
    a("s_barrier")
    if stamps: a("s_memtime s[80:81]\ns_memrealtime s[64:65]")
    if probe: a("s_memrealtime s[72:73]")
    for t, _ in reads(0)[:NE]: a(t)
    a(f"s_waitcnt lgkmcnt({NE - covered(0)})")
    c("main loop: two stages per pass; the barrier publishes the next stage and frees the slot just read")
    a("L_cloop:")
    step(0)
    step(1)
    c("last two stages merged so that the row groups finish one after the other; sums go to LDS as they finish")
    seq = [(0, j, u) for j, u in tiles[:n1]]
    for g in range(4):
        u0 = g & 1
        for j, u in ((2*g, u0), (2*g+1, u0), (2*g+1, u0 ^ 1), (2*g, u0 ^ 1)):
            if (j, u) not in tiles[:n1]: seq.append((0, j, u))
            seq.append((1, j, u))
    fm = chain(seq)
    operands = lambda b, kk, u, j: {XF(b, j + kk - 1), WF(b, kk, u), WF(b, kk, u) + 2}
    dst = lambda text: int(text.split("v[")[1].split(":")[0])
    first_use = {}
    for g, m in enumerate(fm):
        for r in operands(*m): first_use.setdefault(r, g)
    r15 = [t for t, _ in reads(1)]
    for n_, r in enumerate(ADDR): r15 = [t.replace(f", v{r} ", f", v{AL+n_} ") for t in r15]
    pend = sorted([(first_use[dst(t)], 0, t) for t, _ in reads(0)[NE:]] + [(first_use[dst(t)], 1, t) for t in r15], key=lambda e: e[0])
    ops = [(dst(t), -2 - NE + n_) for n_, (t, _) in enumerate(reads(0)[:NE])]
    ncov = covered(0)
    bgap = 3 * n1 - bl
    wq = [((j, u), f"ds_write_b128 v{EW(u)}, v[{ACC(j,u)}:{ACC(j,u)+3}] offset:{j*4096}") for b, j, u in seq if b == 1]
    if xw: wq = [(k_, t.replace("ds_write_b128", "ds_write_b32").split(", v[")[0] + f", v{ACC(*k_)} offset:" + t.split("offset:")[1]) for k_, t in wq]
    WM = 1
    if b64:
        WM = 2
        wq = [((j, u), f"ds_write_b64 v{EW(u)}, v[{ACC(j,u)+2*h}:{ACC(j,u)+2*h+1}] offset:{j*4096+8*h}") for b, j, u in seq if b == 1 for h in range(2)]
        dw = dw * 2
    last_use = {}
    for g, m in enumerate(fm):
        for r in operands(*m): last_use[r] = g
    pfree = max(last_use[XF(0, f)] for f in (-1, 0, 1, 2)) + 1
    assert PS == XF(0, -1)
    Z0, OUT0 = XF(1, -1), 216
    zfree = max(last_use[XF(1, f)] for f in (-1, 0)) + 1
    ppend = list(prd); gpend = rd(0, 0); ep_done = False
    vq = []
    for t in row(0, 0, Z0, OUT0): vq.append(t)
    v_ok = False; g_last = None
    ninst = 0; done_inst = {}
    bar_done = False; nw = 0; lastw = -9
    ev = []
    e_done = 0
    for g, m in enumerate(fm):
        a(mf(*m)); ninst += 1
        if m[0] == 1 and g % 3 == 2: done_inst[(m[3], m[2])] = ninst
        nxt = operands(*fm[g + 1]) if g + 1 < len(fm) else set()
        unc = [n_ for n_, (r, _) in enumerate(ops) if n_ >= ncov and r in nxt]
        assert all(r in [o[0] for o in ops] for r in nxt), ("operand never read", g)
        ready = [e for e in pend if e[1] == 0 or bar_done]
        wrote = False
        if unc:
            cc = max(unc) + 1
            while cc < len(ops) and ops[cc][1] <= g - LAM: cc += 1
            if ops[max(unc)][1] > g - LAM: print("note: short read distance at gap", g, g - ops[max(unc)][1], file=sys.stderr)
            a(f"s_waitcnt lgkmcnt({min(15, len(ops) - cc)})"); ncov = cc
        elif wfirst and wq and wq[0][0] in done_inst and ninst - done_inst[wq[0][0]] >= 8 and g - lastw >= wsp:
            a(wq.pop(0)[1]); ops.append((None, g)); nw += 1; lastw = g
            if nw in (4, 12): ev.append([len(ops), 0])
        elif ev and ev[0][1] == 1:
            assert ep_done
            a("s_barrier"); ev.pop(0); e_done += 1
        elif ev and ops[ev[0][0] - 1][1] <= g - (sd2 if e_done else sd):
            a(f"s_waitcnt lgkmcnt({len(ops) - ev[0][0]})"); ev[0][1] = 1; ncov = max(ncov, ev[0][0])
        elif e_done and gpend:
            assert g >= pfree
            a(gpend.pop(0)); ops.append((None, g)); g_last = len(ops)
        elif wq and nw < dw and (nw < 12 * WM or e_done == 2) and wq[0][0] in done_inst and ninst - done_inst[wq[0][0]] >= 8 and g - lastw >= (wsp if nw < 4 * WM else wsp2):
            assert nw < 12 * WM or e_done == 2
            a(wq.pop(0)[1]); ops.append((None, g)); nw += 1; lastw = g
            if nw in (4 * WM, 12 * WM): ev.append([len(ops), 0])
        elif not bar_done and g >= bgap:
            a("s_barrier"); bar_done = True
        elif bar_done and not ep_done and g >= epg:
            a("s_barrier"); ep_done = True
        elif ready and (g - lastw > rgap or ready[0][0] - g <= LAM + 2):
            pend.remove(ready[0]); a(ready[0][2]); ops.append((dst(ready[0][2]), g))
        elif ppend and ep_done and g >= pfree and g - lastw > rgap and (not pafter or not gpend):
            a(ppend.pop(0)); ops.append((None, g)); g_last = len(ops)
        elif not v_ok and not gpend and not ppend and ops[g_last - 1][1] <= g - LAM + 1:
            assert g >= zfree
            a(f"s_waitcnt lgkmcnt({len(ops) - g_last})"); ncov = max(ncov, g_last); v_ok = True
        elif v_ok and len(vq) > 1 and vper:
            t = vq.pop(0)
            if isinstance(t, tuple):
                a(t[1][0])
                if vper == 2: a(t[1][1]); ninst += 1
                else: vq.insert(0, t[1][1])
            else:
                a(t)
                if vper == 2 and "cvt" in t and "cvt" in str(vq[0]): a(vq.pop(0)); ninst += 1
        elif hop and g == 8:
            a("L_hop2:\ns_cbranch_vccnz L_hopb")
        elif hop and g == 58:
            a("L_hop3:\ns_cbranch_vccnz L_hopb")
        elif nopf and wq and wq[0][0] in done_inst and nw in (2, 3):
            a("s_nop 1"); ninst += 1
        else:
            ninst -= 1
        ninst += 1
    assert not pend and bar_done and e_done == 2 and v_ok
    print("left of group 0 after the last MFMA:", len(vq), file=sys.stderr)
    if stamps: a("s_memtime s[82:83]\ns_memrealtime s[66:67]")
    if probe: a("s_memrealtime s[74:75]")
    rest = packed(vq)
    if sfirst:
        for t in rest: a(t); ninst += 1
        rest = []
    for key, t in wq:
        while 8 - (ninst - done_inst[key]) > 0:
            if len(rest) > 1: a(rest.pop(0)); ninst += 1
            else:
                gap = 8 - (ninst - done_inst[key]); a(f"s_nop {gap-1}"); ninst += gap
        a(t); ninst += 1
    c("row group 3: handed over through the waves' progress words (read ahead of the data, checked before use)")
    a(f"ds_write_b32 v{CF}, v{CV}")
    for t in rest: a(t)
    if cp2 is not None: a(f"s_setprio {cp2}")
    a(f"L_retry:\nds_read_b32 v{FV}, v{FA}")
    for t in rd(3, 80): a(t)
    a(f"s_waitcnt lgkmcnt(0)\nv_cmp_ne_u32 vcc, 1, v{FV}\ns_cbranch_vccnz L_retry")
    for t in packed(row(3, 80, 112, 120)): a(t)
    if probe in ("zero", "pro", "main", "epi"): spin(*{"zero": ("s70", "s70", 0), "pro": ("s70", "s72", 3), "main": ("s72", "s74", 1), "epi": ("s74", "s76", 3)}[probe], "b")
    if not stamps: a("s_endpgm")
    else:
        a("L_fin:\ns_barrier")
        if P:
            a("s_waitcnt vmcnt(0)\ns_cmp_lg_u32 s19, 64\ns_cbranch_scc1 L_end\nv_mov_b32 v30, 0")
            for r in range(2, 18): a(f"v_writelane_b32 v30, s{62+r}, {r}")
            a("""
            v_lshrrev_b32 v31, 20, v30
            v_and_b32 v30, 0xfffff, v30
            v_sub_u32 v31, v30, v31
            v_and_b32 v32, 63, v0
            s_lshl_b32 s26, s2, 8
            s_add_u32 s26, s26, 0x10000
            v_lshl_add_u32 v32, v32, 2, s26
            s_mov_b64 exec, 0xffffffff
            global_store_dword v32, v30, s[88:89]
            global_store_dword v32, v31, s[88:89] offset:128
            s_mov_b64 exec, -1
            """)
            stamp_end(a, extra=[], vbase=176)
        elif L:
            a("s_waitcnt vmcnt(0)\ns_barrier\ns_cmpk_lg_u32 s19, 64\ns_cbranch_scc1 L_end\ns_waitcnt lgkmcnt(0)")
            if lw:
                for r in (60, 62, 64, 66, 68): a(f"s_sub_u32 s{r}, s{r}, s58")
                a("s_sub_u32 s58, s58, s92")
                stamp_end(a, extra=["s58", "s60", "s62", "s64", "s66", "s68"], vbase=176)
            else:
                for r in (56, 58, 60, 62, 64): a(f"s_sub_u32 s{r}, s{r}, s92")
                stamp_end(a, extra=["s56", "s58", "s60", "s62", "s64"], vbase=176)
        elif E:
            a("s_memtime s[84:85]\ns_waitcnt vmcnt(0)\ns_barrier\ns_cmpk_lg_u32 s19, 0\ns_cbranch_scc1 L_end\ns_waitcnt lgkmcnt(0)")
            for r in (64, 66, 56, 58, 60, 62): a(f"s_sub_u32 s{r}, s84, s{r}")
            stamp_end(a, extra=["s64", "s66", "s56", "s58", "s60", "s62"], vbase=176)
        else:
            a("s_memtime s[84:85]\ns_waitcnt vmcnt(0)\ns_barrier\ns_cmpk_lg_u32 s19, 0x100\ns_cbranch_scc1 L_end\ns_waitcnt lgkmcnt(0)")
            a("s_sub_u32 s80, s80, s92\ns_sub_u32 s82, s82, s92\ns_sub_u32 s84, s84, s92\ns_sub_u32 s66, s66, s64\ns_sub_u32 s64, s64, s90")
            if stamps == "C": a("s_sub_u32 s68, s68, s92\ns_sub_u32 s70, s70, s92")
            stamp_end(a, extra=["s80", "s82", "s84", "s64", "s66"] + (["s68", "s70"] if stamps == "C" else []), vbase=176)
        a("L_end:\ns_endpgm")
    if not nopc:
        c("order of the c-stages after the first (4 bits each) per tile class: spreads the first touch of every L2 line over the CUs")
        a(".type L_tab,@object\nL_tab:")
        for t in T:
            p_ = sum(st << (4 * i) for i, st in enumerate(t[1:]))
            a(f".long {p_ & 0xffffffff:#010x}, {p_ >> 32:#010x}")
        a(".size L_tab, 64\nL_pad:")
        c("(unreachable) keeps the code read above and the instruction prefetcher's run-ahead inside this section")
        a(f".fill (8448 - (. - L_pc)) / 4, 4, 0xbf810000")
    ref = "standalone__batchnorm__prompt.s.ref"
    hdr = open(ref).read().split("; Override")[0] if os.path.exists(ref) else ""
    txt = "\n".join(l for l in a.text().split("\n") if l.strip()) + "\n"
    if rt:
        txt = txt.replace("s_memtime s[56:57]", "s_memrealtime s[56:57]").replace("s_memtime s[58:59]", "s_memrealtime s[58:59]").replace("s_sub_u32 s61, s56, s92", "s_sub_u32 s61, s56, s90\n    s_mul_i32 s61, s61, 10")
    return wrap(txt, 256, 512, LDS, vgpr=224, accum=224, header=hdr)

if __name__ == "__main__":
    import ast
    names = []
    for spec in sys.argv[1:]:
        name, _, kw = spec.partition(":")
        d = {}
        for item in filter(None, kw.split(",")):
            kk, v = item.split("=")
            try: v = ast.literal_eval(v.replace("_", ","))
            except Exception: v = v.replace("+", " ")
            d[kk] = v
        open(name + ".s", "w").write(gen(**d))
        names.append(name + ".s")
    print(" ".join(names))
```

```python
import sys, os
from asmlib import *

SLOT = 41216
WOFF = 130 * 128
NS = 3
PLANE = SLOT
PARM = NS * SLOT
PLANE1 = PARM + 512
FLAG = PLANE1 + 32768
LDS = FLAG + 1024
HAND = PLANE1 + 24576

def build(first, touch):
    when = {st: 0 for st in first}
    for slot, q, st in touch: when[st] = slot
    assert sorted(when) == list(range(16))
    T = []
    for q in range(4):
        mine = {slot: st for slot, qq, st in touch if qq == q}
        mine[0] = first[q]
        order = []
        for slot in range(16):
            if slot in mine: pick = mine[slot]
            else: pick = min((st for st in range(16) if st not in order and st not in mine.values() and when[st] < slot), key=lambda st: (when[st], st))
            order.append(pick)
        assert sorted(order) == list(range(16))
        T.append(order)
    return T

def gen(stamps=False, nto="sc0 sc1 nt", k0=8, k=8, prio=3, bpos=29, sd=3, n1=10, LAM=7, bl=19, ahead=1,
        lprio=0, cpf=1, vper=2, nopf=1, cp2=0, wsp=3, epg=37, wfirst=0, ntm=15, perm='x4567012389bacdef', aodd=None, we=0, wsr=None, wsp_='', col=None, po='wwwxxxxWWW', fl=0, rt=0, sched='zg', xsw=7, wb_=5, pw=0, probe=None, lw=0, xw=0, xv=0, dw=16, sfirst=0, nopc=0, hop=0, one=1, rgap=0, wsp2=3, sd2=3, pafter=0, b64=0, nmap=1, ex04=None, late=16, c8=0):
    a = Asm()
    c = lambda t: a.l.append("    ; " + t)
    P = stamps == "P"
    L = stamps == "L"
    tail = lambda s0, q0, ah=ahead: [(s - ah, (s - s0 + q0) & 3, s) for s in range(s0, 16)]
    swp = lambda T_, pm: T_ + [[pm.get(st, st) for st in t] for t in T_]
    sw02 = {0: 2, 1: 3, 2: 0, 3: 1}
    def zs(cls, ah, a0=(1, 2)):
        return build([0,1,0,1], [(a0[s - 2] if s < 4 else s - ah - (s >= late), 2 * cls[s // 2 - 1] + (s & 1), s) for s in range(2, 16)])
    x2 = {st: st ^ 2 for st in range(16)}
    SCH = {"za": lambda: swp(zs([0,1,0,0,1,1,0], ahead), x2),
         "zb": lambda: swp(zs([0,1,0,0,1,1,0], ahead, (1, 1)), x2),
         "zc": lambda: swp(zs([0,1,1,0,0,1,0], ahead), x2),
         "zd": lambda: swp(zs([0,1,0,1,1,0,1], ahead), x2),
         "zf": lambda: swp(zs([0,1,0,1,1,0,1], ahead, (1, 1)), x2),
         "zg": lambda: swp(zs([0,1,0,1,0,0,1], ahead, (1, 1)), x2),
         "zh": lambda: swp(zs([0,1,1,0,0,1,1], ahead, (1, 1)), x2),
         "ze": lambda: swp(zs([0,1,1,0,1,1,0], ahead), x2),
         "l4": lambda: swp(build([0,1,2,3], tail(4, 0)), {}),
         "l2p": lambda: swp(build([0,1,0,1], [(1, 0, 2), (1, 1, 3), (2, 2, 4), (2, 3, 5)] + tail(6, 0)), sw02),
         "l2q": lambda: swp(build([0,1,0,1], [(1, 0, 2), (1, 1, 3), (2, 2, 4), (3, 3, 5)] + tail(6, 0)), sw02),
         "l2s": lambda: swp(build([0,1,0,1], [(1, 0, 2), (2, 1, 3), (2, 2, 4), (3, 3, 5)] + tail(6, 0)), sw02),
         "l2v": lambda: swp(build([0,1,0,1], [(1, 0, 2), (1, 1, 3)] + tail(4, 2)), sw02),
         "l2w": lambda: swp(build([0,1,0,1], [(1, 0, 2), (2, 1, 3)] + tail(4, 2)), sw02),
         "l2x": lambda: swp(build([0,1,0,1], [(2, 0, 2), (2, 1, 3), (2, 2, 2), (2, 3, 3)] + tail(4, 2)), sw02),
         "l2y": lambda: swp(build([0,1,0,1], [(1, 0, 2), (2, 1, 3)] + tail(4, 2)), {**sw02, 4: 6, 5: 7, 6: 4, 7: 5}),
         "l2z": lambda: swp(build([0,1,0,1], [(1, 0, 2), (2, 1, 3), (3, 2, 4), (4, 3, 5), (5, 0, 6), (6, 1, 7), (7, 0, 8), (8, 1, 9), (9, 2, 10), (10, 3, 11), (11, 2, 12), (12, 3, 13), (13, 0, 14), (14, 1, 15)]), {st: st ^ 2 for st in range(12)}),
         "l2pp": lambda: swp(build([0,1,0,1], [(1, 0, 2), (1, 1, 3)] + [((s & ~1) - ahead, (s - 2) & 3, s) for s in range(4, 16)]), sw02),
         "l2t": lambda: swp(build([0,1,0,1], [(1, 0, 2), (1, 1, 3), (2, 2, 4), (3, 3, 5)] + tail(6, 0)), {**sw02, 4: 8, 5: 9, 6: 10, 7: 11, 8: 4, 9: 5, 10: 6, 11: 7}),
         "l2u": lambda: swp(build([0,1,0,1], [(1, 0, 2), (1, 1, 3), (2, 2, 4), (3, 3, 5)] + tail(6, 0)), {**sw02, 8: 12, 9: 13, 10: 14, 11: 15, 12: 8, 13: 9, 14: 10, 15: 11}),
         "l1c": lambda: swp(build([0,0,0,0], [(1, 2, 1), (1, 3, 1), (1, 0, 2), (1, 1, 3), (3, 2, 4), (3, 3, 5), (4, 2, 6), (5, 3, 7)] + tail(8, 0)), {0: 1, 1: 0, 2: 4, 3: 5, 4: 2, 5: 3}),
         "l1d": lambda: swp(build([0,0,0,0], [(1, 0, 1), (1, 1, 1), (1, 2, 1), (1, 3, 1), (2, 0, 2), (2, 1, 3), (2, 2, 2), (2, 3, 3), (3, 0, 4), (3, 1, 5), (4, 2, 6), (5, 3, 7)] + tail(8, 0)), {0: 1, 1: 0, 2: 4, 3: 5, 4: 2, 5: 3}),
         }
    T = SCH[sched]()
    par = lambda X: (X ^ (X >> 2)) & 1
    T32 = [T[4 * par(X) + q] for X in range(8) for q in range(4)]
    if c8: T32 = [[st ^ (c8 if (i >> 2) & 2 else 0) for st in t] for i, t in enumerate(T32)]
    if ex04:
        Te = SCH[ex04]()
        for X in (0, 4):
            for q in range(4):
                assert Te[4 * par(X) + q][0] == T32[4 * X + q][0]
                T32[4 * X + q] = Te[4 * par(X) + q]
    if perm: T32 = [[int(perm[1:][st], 16) for st in t] for t in T32]
    if perm: T = [[int(perm[1:][st], 16) for st in t] for t in T]
    if stamps: stamp_begin(a); a("s_load_dwordx2 s[88:89], s[0:1], 64")
    if probe: a("s_memrealtime s[70:71]")
    c("---- entry: s[36:51] = x, w, mean, var, g, b, out, dbg.  XCD (wg & 7) owns 8 x 4 tiles of 128 rows x 64 columns")
    a(f"""
    s_load_dwordx16 s[36:51], s[0:1], 0
    v_readfirstlane_b32 s19, v0
    s_cmpk_ge_u32 s2, 0x100
    s_cbranch_scc1 L_end
    s_lshr_b32 s20, s2, 3
    s_and_b32 s21, s20, 7
    s_and_b32 s22, s2, 4
    s_lshl1_add_u32 s23, s22, s21
    {"s_andn2_b32 s24, 3, s2" if nmap == 1 else "s_and_b32 s24, s2, 3"}
    s_lshr_b32 s25, s2, 6
    {"s_lshl2_add_u32 s24, s25, s24" if nmap else "s_lshl2_add_u32 s24, s24, s25"}
    s_lshl_b32 s23, s23, 18
    s_lshl_b32 s24, s24, 7
    """)
    if not nopc: a("s_getpc_b64 s[16:17]")
    a("L_pc:\ns_cmpk_ge_u32 s19, 0x100")
    c("s23 = row tile * 128 * 2048 B, s24 = column tile * 128 B, s19 = first thread id of the wave")
    if nopc == 1:
        a("s_cbranch_scc1 L_cons")
    elif nopc == 2:
        c("waves 4-7 leave for their code only once the pointers are here (their fetch miss must not delay the loaders' fetches)")
        a("s_cbranch_scc0 L_load\ns_waitcnt lgkmcnt(0)\ns_branch L_cons\nL_load:")
    else:
        a("s_cbranch_scc0 L_load")
        c("waves 4-7 (MFMA waves): read 64 B of this kernel's code each, so that it is in L2 before it is fetched")
        CPF = {1: "s_load_dword s3, s[16:17], s26\ns_waitcnt lgkmcnt(0)",
               2: "s_waitcnt lgkmcnt(0)\ns_load_dword s3, s[16:17], s26\ns_waitcnt lgkmcnt(0)",
               3: "v_mov_b32 v1, s26\nglobal_load_dword v2, v1, s[16:17]\ns_waitcnt vmcnt(0) lgkmcnt(0)",
               0: "s_waitcnt lgkmcnt(0)"}[cpf]
        a(f"""
        s_lshl_b32 s26, s20, 8
        s_add_u32 s26, s26, s19
        {CPF}
        s_branch L_cons
        L_load:
        """)
    K = sum(t[0] << (4 * i) for i, t in enumerate(T))
    C8 = "s_and_b32 s26, s2, 2\ns_lshl2_add_u32 s31, s26, s31\n" if c8 else ""
    for X in range(8):
        for q in range(4): assert T32[4 * X + q][0] == T[4 * par(X) + q][0] + (8 if c8 and X & 2 else 0)
    TAB = f"s_lshl2_add_u32 s26, s2, s22\ns_and_b32 s26, s26, 4\ns_or_b32 s26, s29, s26\ns_lshl_b32 s26, s26, 2\ns_lshr_b32 s31, {K:#x}, s26\ns_and_b32 s31, s31, 15\n{C8}s_and_b32 s26, s2, 7\ns_lshl2_add_u32 s29, s26, s29\ns_lshl3_add_u32 s29, s29, L_tab-L_pc"
    T8 = not (ex04 or c8)
    if T8: TAB = f"s_lshl2_add_u32 s26, s2, s22\ns_and_b32 s26, s26, 4\ns_or_b32 s29, s29, s26\ns_lshl_b32 s26, s29, 2\ns_lshr_b32 s31, {K:#x}, s26\ns_and_b32 s31, s31, 15\ns_lshl3_add_u32 s29, s29, L_tab-L_pc"
    if nopc:
        pk = [sum(st << (4 * i) for i, st in enumerate(t)) for t in T]
        lo = [p_ & 0xffffffff for p_ in pk]; hi = [p_ >> 32 for p_ in pk]
        assert hi[:4] == hi[4:]
        dx = [lo[q] ^ lo[q + 4] for q in range(4)]
        TAB = f"s_mov_b32 s54, {lo[0]:#x}\ns_mov_b32 s55, {hi[0]:#x}\n"
        for q in range(1, 4): TAB += f"s_cmp_ge_u32 s29, {q}\ns_cselect_b32 s54, {lo[q]:#x}, s54\ns_cselect_b32 s55, {hi[q]:#x}, s55\n"
        for q in range(4): assert dx[q] == ((lo[q] & ~(lo[q] >> 1) & 0x44444444) >> 1)
        TAB += "s_lshl2_add_u32 s26, s2, s22\ns_bitcmp1_b32 s26, 2\ns_cselect_b32 s26, 0x44444444, 0\ns_and_b32 s26, s26, s54\ns_lshr_b32 s27, s54, 1\ns_andn2_b32 s26, s26, s27\ns_lshr_b32 s26, s26, 1\ns_xor_b32 s54, s54, s26"
    c("---- waves 0-3: LDS-DMA loaders.  v5/v6: x pieces, v7/v8: W pieces (own / partner half), v9: halo rows")
    a(f"""
    v_bfe_u32 v2, v0, 3, 3
    v_and_b32 v3, 7, v0
    v_lshrrev_b32 v4, 1, v2
    v_xor_b32 v5, v3, v4
    s_lshl_b32 s12, s19, 6
    s_add_u32 s26, s12, s23
    v_lshl_add_u32 v5, v5, 4, s26
    v_lshl_add_u32 v5, v2, 14, v5
    {f"s_bitcmp1_b32 s2, {xsw}" if xsw else "s_cmp_lg_u32 s2, s2"}
    s_cselect_b32 s26, 0x20040, 0
    v_xor_b32 v5, s26, v5
    v_xor_b32 v6, 0x20040, v5
    s_lshr_b32 s26, s26, 7
    s_add_u32 s12, s12, s26
    v_and_b32 v4, 2, v2
    v_xor_b32 v7, v4, v3
    s_lshl_b32 s26, s19, 9
    s_add_u32 s26, s26, s24
    v_lshl_add_u32 v7, v7, 4, s26
    v_lshl_add_u32 v7, v2, 11, v7
    s_lshr_b32 s14, s19, 5
    s_bitcmp1_b32 s2, {wb_}
    s_cselect_b32 s26, 0x4040, 0
    s_addc_u32 s14, s14, 0
    v_xor_b32 v7, s26, v7
    v_xor_b32 v8, 0x4040, v7
    s_xor_b32 s15, s14, 1
    s_mulk_i32 s14, 3072
    s_mulk_i32 s15, 3072
    s_addk_i32 s14, {WOFF}
    s_addk_i32 s15, {WOFF}
    v_mul_u32_u24 v9, 7, v2
    v_xor_b32 v9, v9, v3
    s_add_u32 s26, s23, 0x40000
    v_lshl_add_u32 v9, v9, 4, s26
    v_mul_u32_u24 v4, 0x40800, v2
    v_sub_u32 v9, v9, v4
    s_add_u32 s29, s21, s25
    s_and_b32 s29, s29, 3
    {TAB}
    s_lshl_b32 s6, 1, 22
    s_lshl_b32 s7, 1, 17
    s_lshl_b32 s10, 3, 21
    s_mov_b32 s11, s7
    v_cmp_gt_u32 vcc, 64, v0
    v_and_b32 v16, 63, v0
    v_lshl_add_u32 v10, v16, 1, s24
    s_mov_b32 s30, 0
    s_mov_b32 s33, 0
    {"s_memtime s[56:57]" if L else ""}
    s_waitcnt lgkmcnt(0)
    {"s_memtime s[58:59]" if L else ""}
    {"s_memrealtime s[72:73]" if probe in ("ka", "iss", "f9", "f7", "f5", "f0") else ""}
    {"" if nopc else "s_load_dwordx2 s[54:55], s[16:17], s29"}
    """)
    c("one pass = one c-stage s31; s[54:55] = the stages still to come, s30 = pass, s33 = ring slot offset")
    a("L_adv:")
    if nopc: a("s_and_b32 s31, s54, 15")
    a("s_lshl_b32 s32, s31, 17")
    X, W = "s[4:7]", "s[8:11]"
    xp = [(["s12", "s13"][n >> 1], f"buffer_load_dwordx4 v{5 + (n >> 1)}, {X}, s31 offen offset:{(n & 1)*2048} lds") for n in range(4)]
    wa = [("s14", f"buffer_load_dwordx4 v7, {W}, s{[32,34,35][t]} offen offset:{t*1024} lds") for t in range(3)]
    wb = [("s15", f"buffer_load_dwordx4 v8, {W}, s{[32,34,35][t]} offen offset:{t*1024} lds") for t in range(3)]
    pieces = wa + xp + wb
    rec = "s_sub_u32 s60, s56, s58\ns_min_u32 s60, s60, 0xfff\ns_lshl_b32 s60, s60, 20\ns_sub_u32 s61, s56, s92\ns_or_b32 s60, s60, s61\n"
    def bar(n, cond):
        c("previous stage landed (wave 0 has one more load in flight: the halo) -> publish it")
        a(f"""
        {cond}
        s_cbranch_scc0 L_nb{n}
        """)
        if L and n == k0 and not lw: a("s_cmp_lg_u32 s30, 1\ns_cbranch_scc1 L_st0\ns_memtime s[62:63]\nL_st0:")
        a(f"""
        s_waitcnt vmcnt({n+1})
        s_cbranch_vccnz L_b{n}
        s_waitcnt vmcnt({n})
        L_b{n}:
        """)
        if P: a("s_waitcnt lgkmcnt(0)\n" + rec + "s_mov_b32 s61, m0\ns_mov_b32 m0, s30\ns_nop 0\ns_movreld_b32 s62, s60\ns_mov_b32 m0, s61\ns_memtime s[58:59]")
        if L and n == k0 and not lw: a("s_cmp_lg_u32 s30, 1\ns_cbranch_scc1 L_st1\ns_memtime s[64:65]\nL_st1:")
        a("s_barrier")
        if P: a("s_memtime s[56:57]")
        a(f"L_nb{n}:")
    LW = "s_waitcnt vmcnt(9); s_memtime s[62:63]; s_waitcnt vmcnt(7); s_memtime s[64:65]; s_waitcnt vmcnt(5); s_memtime s[66:67]; s_waitcnt vmcnt(0); s_memtime s[68:69]; " if lw else ""
    assert SLOT == 0xa100 and NS == 3
    assert min(k0, k) > 3
    fill = {0: "s_mov_b64 s[8:9], s[38:39]", 3: "s_mov_b64 exec, -1", 5: "s_lshr_b64 s[54:55], s[54:55], 4" if nopc else "s_nop 0", 7: f"s_add_u32 s13, s33, {SLOT}"}
    for n in range(11):
        if n == k0 and k0 == k: bar(n, "s_cmp_ge_u32 s30, 1")
        elif n == k0: bar(n, "s_cmp_eq_u32 s30, 1")
        elif n == k: bar(n, "s_cmp_ge_u32 s30, 2")
        if n == 10: break
        if n == 1: a(f"s_add_u32 s34, s32, {0x200000-1024}\ns_lshl_b32 s31, s31, 7")
        if n == 2: a(f"s_add_u32 s35, s32, {0x400000-2048}\ns_mov_b64 s[4:5], s[36:37]")
        if n == 3:
            a(f"""
            s_cbranch_vccz L_nh
            s_add_u32 m0, s33, 16384
            s_mov_b64 exec, 0xffff
            buffer_load_dwordx4 v9, {X}, s31 offen lds
            L_nh:
            """)
        m, ins = pieces[n]
        if n == 5: a(f"s_xor_b32 m0, m0, 0x400\n{fill[n]}")
        elif n in fill: a(f"s_add_u32 m0, s33, {m}\n{fill[n]}")
        a(ins)
    a(f"""
    s_bitcmp1_b32 s33, 16
    s_cselect_b32 s33, 0, s13
    s_add_u32 s30, s30, 1
    {f"s_cmp_lg_u32 s30, 1; s_cbranch_scc1 L_np; s_waitcnt vmcnt({probe[1] if probe[0] == 'f' else 63}); s_memrealtime s[74:75]; L_np:".replace("; ", chr(10)) if probe in ("iss", "f9", "f7", "f5", "f0") else ""}
    {f"s_cmp_lg_u32 s30, 1; s_cbranch_scc1 L_nt; s_memtime s[60:61]; {LW}L_nt:".replace("; ", chr(10)) if L else ""}
    {"" if nopc else "s_waitcnt lgkmcnt(0); s_and_b32 s31, s54, 15; s_lshr_b64 s[54:55], s[54:55], 4".replace("; ", chr(10))}
    s_cmp_lt_u32 s30, 16
    s_cbranch_scc1 L_adv
    """)
    ER, ER1, PA, O0, FA, FV = 208, 210, 212, 213, 214, 215
    if one and not P:
        a("s_mov_b32 s26, 0xbfb8aa3b\ns_cbranch_vccnz L_par\ns_waitcnt vmcnt(0)\ns_barrier\ns_branch L_ep\nL_par:")
    c("---- behind the last stage: BN parameters of the tile's 64 columns (L2 hits by now)")
    a(f"""
    global_load_ushort v12, v10, s[40:41]
    global_load_ushort v13, v10, s[42:43]
    global_load_ushort v14, v10, s[44:45]
    global_load_ushort v15, v10, s[46:47]
    s_waitcnt vmcnt(4)
    """)
    if P: a("s_waitcnt lgkmcnt(0)\n" + rec + "s_mov_b32 s78, s60\ns_memtime s[58:59]")
    a("s_barrier")
    if P: a("s_memtime s[56:57]\ns_waitcnt lgkmcnt(0)\n" + rec + "s_mov_b32 s79, s60")
    if stamps == "E": a("s_memtime s[64:65]")
    def epi_addr():
        a(f"""
        v_lshlrev_b32 v4, 1, v3
        v_xor_b32 v4, v4, v2
        s_and_b32 s26, s19, 0xc0
        s_lshl_b32 s26, s26, 5
        s_add_u32 s26, s26, {PLANE}
        v_lshl_add_u32 v4, v4, 4, s26
        v_lshl_add_u32 v{ER}, v2, 8, v4
        v_xor_b32 v{ER+1}, 16, v{ER}
        v_add_u32 v{ER1}, {PLANE1-PLANE}, v{ER}
        v_add_u32 v{ER1+1}, {PLANE1-PLANE}, v{ER+1}
        v_lshlrev_b32 v4, 5, v3
        v_add_u32 v{PA}, {PARM}, v4
        v_and_b32 v4, 3, v2
        v_lshrrev_b32 v1, 2, v2
        v_lshl_add_u32 v1, v4, 1, v1
        s_bitcmp1_b32 s19, 6
        s_cselect_b32 s27, 9, 0
        v_xor_b32 v1, s27, v1
        s_and_b32 s26, s19, 0x80
        s_lshl_b32 s26, s26, 4
        s_add_u32 s26, s26, s23
        s_add_u32 s26, s26, s24
        v_lshl_add_u32 v4, v3, 4, s26
        v_lshl_add_u32 v{O0}, v1, 14, v4
        s_mov_b32 s50, 0x400000
        s_mov_b32 s51, 0x20000
        s_mov_b32 s26, 0xbfb8aa3b
        s_movk_i32 s29, 0x3000
        v_lshlrev_b32 v4, 4, v0
        v_add_u32 v4, {HAND-4096}, v4
        ds_write_b128 v4, v[{ER}:{ER+3}]
        ds_write_b64 v4, v[{PA}:{PA+1}] offset:4096
        """)
    PS, PT = 64, 72
    prd = [f"ds_read_b128 v[{PS}:{PS+3}], v{PA}", f"ds_read_b128 v[{PT}:{PT+3}], v{PA} offset:256", f"ds_read_b128 v[{PS+4}:{PS+7}], v{PA} offset:16", f"ds_read_b128 v[{PT+4}:{PT+7}], v{PA} offset:272"]
    def rd(g, y):
        return [f"ds_read_b128 v[{y+8*pl+4*e}:{y+8*pl+4*e+3}], v{(ER1 if pl else ER)+e} offset:{g*8192}" for e in range(2) for pl in range(2)]
    def row(g, y, z, o):
        p = y + 8
        pr = lambda r: f"v[{r}:{r+1}]"
        A = [(f"v_pk_add_f32 {pr(y+2*n)}, {pr(y+2*n)}, {pr(p+2*n)}", [f"v_add_f32 v{y+m}, v{y+m}, v{p+m}" for m in (2*n, 2*n+1)]) for n in range(4)]
        B = [(f"v_pk_fma_f32 {pr(y+2*n)}, {pr(y+2*n)}, {pr(PS+2*n)}, {pr(PT+2*n)}", [f"v_fma_f32 v{y+m}, v{y+m}, v{PS+m}, v{PT+m}" for m in (2*n, 2*n+1)]) for n in range(4)]
        C = [(f"v_pk_fma_f32 {pr(z+2*n)}, {pr(z+2*n)}, s[26:27], s[26:27] op_sel_hi:[1,0,0]", [f"v_fma_f32 v{z+m}, v{z+m}, s26, s26" for m in (2*n, 2*n+1)]) for n in range(4)]
        M = [(f"v_pk_mul_f32 {pr(y+2*n)}, {pr(y+2*n)}, {pr(z+2*n)}", [f"v_mul_f32 v{y+m}, v{y+m}, v{z+m}" for m in (2*n, 2*n+1)]) for n in range(4)]
        E_ = [f"v_exp_f32 v{z+n}, v{y+n}" for n in range(8)]
        Rr = [f"v_rcp_f32 v{z+n}, v{z+n}" for n in range(8)]
        V = [f"v_cvt_pk_bf16_f32 v{o+n}, v{y+2*n}, v{y+2*n+1}" for n in range(4)]
        S = f"buffer_store_dwordx4 v[{o}:{o+3}], v{O0}, s[48:51], {['0', 's27', 's28', 's29'][g]} offen {nto if ntm >> g & 1 else nto.replace(' nt', '')}"
        return [A[0], A[1], B[0], A[2], B[1], E_[0], A[3], E_[1], B[2], E_[2], B[3], E_[3], C[0], E_[4], E_[5], C[1], E_[6], E_[7], C[2], Rr[0], Rr[1], C[3], Rr[2], Rr[3], M[0], Rr[4], Rr[5], M[1], Rr[6], V[0], Rr[7], M[2], V[1], M[3], V[2], V[3], S]
    packed = lambda L_: [t[0] if isinstance(t, tuple) else t for t in L_]
    a(f"s_mov_b32 s26, {PARM}\nv_lshl_add_u32 v17, v16, 2, s26\ns_mov_b32 s26, 0xbfb8aa3b")
    c("scale' = -log2(e) * g / sqrt(var + eps), shift' = -log2(e) * (b - mean * g / sqrt(var + eps))")
    a(f"""
    s_waitcnt vmcnt(0)
    v_lshlrev_b32 v13, 16, v13
    v_add_f32 v13, 0x3727c5ac, v13
    v_rsq_f32 v13, v13
    v_lshlrev_b32 v12, 16, v12
    v_lshlrev_b32 v14, 16, v14
    v_lshlrev_b32 v15, 16, v15
    v_mul_f32 v13, v13, v14
    v_fma_f32 v15, -v12, v13, v15
    v_mul_f32 v13, s26, v13
    v_mul_f32 v15, s26, v15
    ds_write_b32 v17, v13
    ds_write_b32 v17, v15 offset:256
    """)
    E = stamps == "E"
    a("s_waitcnt lgkmcnt(0)\nL_ep:\ns_barrier")
    c("epilogue addresses, left in LDS by the MFMA waves")
    a(f"""
    s_mov_b32 s27, {HAND}
    v_lshl_add_u32 v11, v0, 4, s27
    ds_read_b64 v[{PA}:{PA+1}], v11 offset:4096
    ds_read_b128 v[{ER}:{ER+3}], v11
    s_mov_b32 s50, 0x400000
    s_mov_b32 s51, 0x20000
    s_movk_i32 s27, 0x1000
    s_movk_i32 s28, 0x2000
    """)
    if lprio: a(f"s_setprio {lprio}")
    c("row group 0 published (finished by the MFMA waves), then groups 1 and 2 (finished here)")
    a("s_barrier")
    if E: a("s_memtime s[66:67]")
    a("s_waitcnt lgkmcnt(0)")
    for t in prd: a(t)
    a("s_barrier")
    if E: a("s_memtime s[56:57]")
    for t in rd(1, 80) + rd(2, 96): a(t)
    if lprio: a("s_setprio 0")
    a("s_waitcnt lgkmcnt(0)")
    if E: a("s_memtime s[58:59]")
    for t in packed(row(1, 80, 112, 128)): a(t)
    if E: a("s_memtime s[60:61]")
    for t in packed(row(2, 96, 120, 132))[(-1 if xv else 0):]: a(t)
    if E: a("s_memtime s[62:63]")

    def spin(lo, hi, sh, tag):
        a(f"""
        s_waitcnt vmcnt(0)
        s_memrealtime s[76:77]
        s_waitcnt lgkmcnt(0)
        s_sub_u32 s78, {hi}, {lo}
        s_lshl_b32 s78, s78, {sh}
        s_min_u32 s78, s78, 20000
        L_probe{tag}:
        s_memrealtime s[60:61]
        s_waitcnt lgkmcnt(0)
        s_sub_u32 s62, s60, s76
        s_cmp_lt_u32 s62, s78
        s_cbranch_scc1 L_probe{tag}
        """)
    if probe == "ka": spin("s70", "s72", 4, "a")
    if probe in ("iss", "f9", "f7", "f5", "f0"):
        a("s_cmp_lg_u32 s19, 64\ns_cbranch_scc1 L_end\ns_cmp_lg_u32 s20, 9\ns_cbranch_scc1 L_end")
        spin("s72", "s74", 4, "a")
    if wsr is not None:
        a(f"""
        s_load_dwordx2 s[44:45], s[0:1], 64
        s_mov_b32 s46, 0x10000000
        s_mov_b32 s47, 0x20000
        v_lshlrev_b32 v1, 7, v0
        s_lshl_b32 s48, s2, 17
        s_add_u32 s48, s48, {wsr << 20}
        s_waitcnt lgkmcnt(0)
        """)
        for i in range(4): a(f"buffer_load_dword v2, v1, s[44:47], s48 offen {wsp_}\ns_add_u32 s48, s48, 0x8000")
        a("s_waitcnt vmcnt(0)")
    a("s_branch L_fin" if stamps else "L_end:\ns_endpgm")
    R = 8
    ACC = lambda j, u: (j * 2 + u) * 4
    XF = lambda buf, j: 64 + buf * 64 + (j + 1) * 4
    WF = lambda buf, kk, u: 64 + buf * 64 + 40 + (kk * 2 + u) * 4
    AX = lambda cls: 192 + cls
    AW = lambda u: 195 + u
    EW = lambda u: 197 + u
    ADDR = list(range(192, 197))
    AL, CF, CV = 199, 204, 205
    c("(unreachable) puts the main loop head on a 32-byte boundary")
    a(f".fill (((32 - ((. - {KNAME} + L_cloop - L_cons) & 31)) & 31) / 4), 4, 0xbf810000")
    a("L_cons:")
    if stamps == "C": a("s_memtime s[68:69]")
    if nopc == 1: a("s_waitcnt lgkmcnt(0)")
    c("---- waves 4-7: wave (kh, nh) accumulates 128 rows x 32 columns over c-half kh of every stage")
    if hop:
        c("three of the waves jump ahead and straight back: the fetch pulls those parts of the code into the instruction cache early")
        a("s_mov_b64 vcc, -1\ns_cmpk_eq_u32 s19, 0x140\ns_cbranch_scc1 L_hop1\ns_cmpk_eq_u32 s19, 0x180\ns_cbranch_scc1 L_hop2\ns_cmpk_eq_u32 s19, 0x1c0\ns_cbranch_scc1 L_hop3\nL_hopb:\ns_mov_b64 vcc, 0")
    c("touch the BN parameter lines so that the epilogue's loads hit L2")
    if pw:
        for r in (40, 42, 44, 46):
            a(f"s_load_dword s3, s[{r}:{r+1}], s24\ns_load_dword s3, s[{r}:{r+1}], s24 offset:64")
    else:
        a("""
        s_bitcmp1_b32 s19, 6
        s_cselect_b64 s[4:5], s[42:43], s[40:41]
        s_cselect_b64 s[6:7], s[46:47], s[44:45]
        s_bitcmp1_b32 s19, 7
        s_cselect_b64 s[4:5], s[6:7], s[4:5]
        s_load_dword s3, s[4:5], s24
        s_load_dword s3, s[4:5], s24 offset:64
        """)
    c("lane (i, G): tile j holds row 8*pi(i)+j; x fragment f = rows 8*pi+f (f = -1..8) serves tap k of tile j = f-k+1")
    a(f"""
    v_and_b32 v10, 15, v0
    v_bfe_u32 v11, v0, 4, 2
    v_lshrrev_b32 v1, 2, v10
    v_lshrrev_b32 v2, 3, v10
    v_xor_b32 v1, v1, v2
    v_and_b32 v1, 1, v1
    v_and_b32 v2, 3, v10
    v_lshl_add_u32 v1, v2, 1, v1
    v_and_or_b32 v1, v10, 8, v1
    v_bfe_u32 v12, v0, 7, 1
    v_bfe_u32 v13, v0, 6, 1
    v_lshl_add_u32 v2, v12, 2, v11
    v_lshrrev_b32 v4, 1, v1
    v_xor_b32 v4, v4, v2
    v_lshlrev_b32 v4, 4, v4
    v_lshl_add_u32 v{AX(1)}, v1, 7, v4
    v_add_u32 v3, -1, v1
    v_bfe_u32 v4, v3, 1, 3
    v_xor_b32 v4, v4, v2
    v_lshlrev_b32 v4, 4, v4
    v_ashrrev_i32 v5, 31, v3
    v_and_b32 v5, 18, v5
    v_add_u32 v3, 0x70, v3
    v_add_u32 v3, v3, v5
    v_lshl_add_u32 v{AX(0)}, v3, 7, v4
    v_add_u32 v3, 1, v1
    v_bfe_u32 v4, v3, 1, 3
    v_xor_b32 v4, v4, v2
    v_lshlrev_b32 v4, 4, v4
    v_and_b32 v5, 16, v3
    v_and_b32 v3, 15, v3
    v_lshl_add_u32 v3, v5, 3, v3
    v_lshl_add_u32 v{AX(2)}, v3, 7, v4
    v_mul_u32_u24 v2, 3072, v2
    v_bfe_u32 v4, v0, 2, 2
    v_lshl_add_u32 v2, v4, 7, v2
    v_and_b32 v5, 3, v0
    v_lshl_add_u32 v2, v5, 3, v2
    v_and_b32 v3, 1, v11
    v_xor_b32 v3, v3, v13
    v_lshrrev_b32 v4, 1, v4
    v_lshl_add_u32 v3, v3, 1, v4
    v_lshl_add_u32 v2, v3, 5, v2
    v_add_u32 v{AW(0)}, {WOFF}, v2
    v_xor_b32 v{AW(1)}, 32, v{AW(0)}
    v_lshl_add_u32 v2, v13, 3, v11
    v_and_b32 v3, 7, v10
    v_xor_b32 v2, v2, v3
    v_lshlrev_b32 v2, 4, v2
    v_lshl_add_u32 v2, v10, 8, v2
    v_mul_u32_u24 v3, {PLANE1-PLANE}, v12
    v_add_u32 v2, v2, v3
    v_add_u32 v{EW(0)}, {PLANE}, v2
    v_xor_b32 v{EW(1)}, 64, v{EW(0)}
    v_lshlrev_b32 v2, 2, v0
    v_add_u32 v{CF}, {FLAG-1024}, v2
    v_mov_b32 v{CV}, 1
    v_and_b32 v4, 3, v0
    v_mul_u32_u24 v4, 0x104, v4
    v_add_u32 v{FA}, {FLAG}, v4
    v_bfe_u32 v2, v0, 3, 3
    v_and_b32 v3, 7, v0
    """)
    epi_addr()
    for n_, r in enumerate(ADDR): a(f"v_mov_b32 v{AL+n_}, v{r}")
    for r in range(0, 64, 2): a(f"v_mov_b64 v[{r}:{r+1}], 0")
    a(f"ds_write_b32 v{CF}, v0\ns_mov_b32 s30, 0\ns_mov_b32 s33, 0\ns_mov_b32 s35, {SLOT}")
    if prio: a(f"s_setprio {prio}")
    if pw: a("s_waitcnt lgkmcnt(0)")
    if stamps == "C": a("s_memtime s[70:71]")
    tiles = [(j, 0) for j in range(4)] + [(j, 1) for j in range(4)] + [(j, 1) for j in range(4, 8)] + [(j, 0) for j in range(4, 8)]
    def chain(seq):
        out = []
        for n_, (b, j, u) in enumerate(seq): out += [(b, kk, u, j) for kk in ((2, 1, 0) if n_ & 1 else (0, 1, 2))]
        return out
    def mf(b, kk, u, j):
        return f"v_mfma_f32_16x16x32_bf16 v[{ACC(j,u)}:{ACC(j,u)+3}], v[{WF(b,kk,u)}:{WF(b,kk,u)+3}], v[{XF(b,j+kk-1)}:{XF(b,j+kk-1)+3}], v[{ACC(j,u)}:{ACC(j,u)+3}]"
    def reads(buf):
        Lr = []; seen = set()
        for n_, (_, kk, u, j) in enumerate(chain([(buf, j, u) for j, u in tiles])):
            if ("w", kk, u) not in seen:
                seen.add(("w", kk, u)); r = WF(buf, kk, u)
                Lr += [(f"ds_read_b64_tr_b16 v[{r+2*e}:{r+2*e+1}], v{AW(u)} offset:{kk*1024 + e*512}", n_) for e in range(2)]
            f = j + kk - 1
            if ("x", f) not in seen:
                seen.add(("x", f)); r = XF(buf, f)
                cls = 0 if f == -1 else (2 if f == R else 1)
                Lr.append((f"ds_read_b128 v[{r}:{r+3}], v{AX(cls)} offset:{f*2048 if cls == 1 else 0}", n_))
        return Lr
    upd = ["s_add_u32 s33, s33, 1", "s_cmp_eq_u32 s33, 3", f"s_cselect_b32 s34, {(-2*SLOT) & 0xffffffff:#x}, s35", "s_cselect_b32 s33, 0, s33"] + [f"v_add_u32 v{r}, s34, v{r}" for r in ADDR]
    NE = min(22, 45 - bpos)
    WAITS = [-2, 2, 10, 23]
    need = [n_ for _, n_ in reads(0)]
    covered = lambda wi: 22 if wi == len(WAITS) - 1 else sum(1 for n_ in need if n_ <= WAITS[wi + 1])
    def step(buf):
        late = [t for t, _ in reads(buf)[NE:]]
        early = [t for t, _ in reads(buf ^ 1)[:NE]]
        misc = list(upd) + (["s_add_u32 s30, s30, 1", "s_cmp_lt_u32 s30, 7"] if buf else [])
        nr = NE
        for g, m in enumerate(chain([(buf, j, u) for j, u in tiles])):
            a(mf(*m))
            if g in WAITS:
                assert nr >= covered(WAITS.index(g))
                a(f"s_waitcnt lgkmcnt({nr - covered(WAITS.index(g))})")
            elif late: a(late.pop(0)); nr += 1
            elif g < bpos:
                if misc: a(misc.pop(0))
                elif hop and buf == 0 and g == 26: a("L_hop1:\ns_cbranch_vccnz L_hopb")
            elif g == bpos:
                assert not misc and g > WAITS[-1]
                a("s_barrier")
            elif early: a(early.pop(0))
            elif g == 46: a(f"s_waitcnt lgkmcnt({NE - covered(0)})")
            elif g == 47 and buf: a("s_cbranch_scc1 L_cloop")
    a("s_barrier")
    if stamps: a("s_memtime s[80:81]\ns_memrealtime s[64:65]")
    if probe: a("s_memrealtime s[72:73]")
    for t, _ in reads(0)[:NE]: a(t)
    a(f"s_waitcnt lgkmcnt({NE - covered(0)})")
    c("main loop: two stages per pass; the barrier publishes the next stage and frees the slot just read")
    a("L_cloop:")
    step(0)
    step(1)
    c("last two stages merged so that the row groups finish one after the other; sums go to LDS as they finish")
    seq = [(0, j, u) for j, u in tiles[:n1]]
    for g in range(4):
        u0 = g & 1
        for j, u in ((2*g, u0), (2*g+1, u0), (2*g+1, u0 ^ 1), (2*g, u0 ^ 1)):
            if (j, u) not in tiles[:n1]: seq.append((0, j, u))
            seq.append((1, j, u))
    fm = chain(seq)
    operands = lambda b, kk, u, j: {XF(b, j + kk - 1), WF(b, kk, u), WF(b, kk, u) + 2}
    dst = lambda text: int(text.split("v[")[1].split(":")[0])
    first_use = {}
    for g, m in enumerate(fm):
        for r in operands(*m): first_use.setdefault(r, g)
    r15 = [t for t, _ in reads(1)]
    for n_, r in enumerate(ADDR): r15 = [t.replace(f", v{r} ", f", v{AL+n_} ") for t in r15]
    pend = sorted([(first_use[dst(t)], 0, t) for t, _ in reads(0)[NE:]] + [(first_use[dst(t)], 1, t) for t in r15], key=lambda e: e[0])
    ops = [(dst(t), -2 - NE + n_) for n_, (t, _) in enumerate(reads(0)[:NE])]
    ncov = covered(0)
    bgap = 3 * n1 - bl
    wq = [((j, u), f"ds_write_b128 v{EW(u)}, v[{ACC(j,u)}:{ACC(j,u)+3}] offset:{j*4096}") for b, j, u in seq if b == 1]
    if xw: wq = [(k_, t.replace("ds_write_b128", "ds_write_b32").split(", v[")[0] + f", v{ACC(*k_)} offset:" + t.split("offset:")[1]) for k_, t in wq]
    WM = 1
    if b64:
        WM = 2
        wq = [((j, u), f"ds_write_b64 v{EW(u)}, v[{ACC(j,u)+2*h}:{ACC(j,u)+2*h+1}] offset:{j*4096+8*h}") for b, j, u in seq if b == 1 for h in range(2)]
        dw = dw * 2
    last_use = {}
    for g, m in enumerate(fm):
        for r in operands(*m): last_use[r] = g
    pfree = max(last_use[XF(0, f)] for f in (-1, 0, 1, 2)) + 1
    assert PS == XF(0, -1)
    Z0, OUT0 = XF(1, -1), 216
    zfree = max(last_use[XF(1, f)] for f in (-1, 0)) + 1
    ppend = list(prd); gpend = rd(0, 0); ep_done = False
    vq = []
    for t in row(0, 0, Z0, OUT0): vq.append(t)
    v_ok = False; g_last = None
    ninst = 0; done_inst = {}
    bar_done = False; nw = 0; lastw = -9
    ev = []
    e_done = 0
    for g, m in enumerate(fm):
        a(mf(*m)); ninst += 1
        if m[0] == 1 and g % 3 == 2: done_inst[(m[3], m[2])] = ninst
        nxt = operands(*fm[g + 1]) if g + 1 < len(fm) else set()
        unc = [n_ for n_, (r, _) in enumerate(ops) if n_ >= ncov and r in nxt]
        assert all(r in [o[0] for o in ops] for r in nxt), ("operand never read", g)
        ready = [e for e in pend if e[1] == 0 or bar_done]
        wrote = False
        if unc:
            cc = max(unc) + 1
            while cc < len(ops) and ops[cc][1] <= g - LAM: cc += 1
            if ops[max(unc)][1] > g - LAM: print("note: short read distance at gap", g, g - ops[max(unc)][1], file=sys.stderr)
            a(f"s_waitcnt lgkmcnt({min(15, len(ops) - cc)})"); ncov = cc
        elif wfirst and wq and wq[0][0] in done_inst and ninst - done_inst[wq[0][0]] >= 8 and g - lastw >= wsp:
            a(wq.pop(0)[1]); ops.append((None, g)); nw += 1; lastw = g
            if nw in (4, 12): ev.append([len(ops), 0])
        elif ev and ev[0][1] == 1:
            assert ep_done
            a("s_barrier"); ev.pop(0); e_done += 1
        elif ev and ops[ev[0][0] - 1][1] <= g - (sd2 if e_done else sd):
            a(f"s_waitcnt lgkmcnt({len(ops) - ev[0][0]})"); ev[0][1] = 1; ncov = max(ncov, ev[0][0])
        elif e_done and gpend:
            assert g >= pfree
            a(gpend.pop(0)); ops.append((None, g)); g_last = len(ops)
        elif wq and nw < dw and (nw < 12 * WM or e_done == 2) and wq[0][0] in done_inst and ninst - done_inst[wq[0][0]] >= 8 and g - lastw >= (wsp if nw < 4 * WM else wsp2):
            assert nw < 12 * WM or e_done == 2
            a(wq.pop(0)[1]); ops.append((None, g)); nw += 1; lastw = g
            if nw in (4 * WM, 12 * WM): ev.append([len(ops), 0])
        elif not bar_done and g >= bgap:
            a("s_barrier"); bar_done = True
        elif bar_done and not ep_done and g >= epg:
            a("s_barrier"); ep_done = True
        elif ready and (g - lastw > rgap or ready[0][0] - g <= LAM + 2):
            pend.remove(ready[0]); a(ready[0][2]); ops.append((dst(ready[0][2]), g))
        elif ppend and ep_done and g >= pfree and g - lastw > rgap and (not pafter or not gpend):
            a(ppend.pop(0)); ops.append((None, g)); g_last = len(ops)
        elif not v_ok and not gpend and not ppend and ops[g_last - 1][1] <= g - LAM + 1:
            assert g >= zfree
            a(f"s_waitcnt lgkmcnt({len(ops) - g_last})"); ncov = max(ncov, g_last); v_ok = True
        elif v_ok and len(vq) > 1 and vper:
            t = vq.pop(0)
            if isinstance(t, tuple):
                a(t[1][0])
                if vper == 2: a(t[1][1]); ninst += 1
                else: vq.insert(0, t[1][1])
            else:
                a(t)
                if vper == 2 and "cvt" in t and "cvt" in str(vq[0]): a(vq.pop(0)); ninst += 1
        elif hop and g == 8:
            a("L_hop2:\ns_cbranch_vccnz L_hopb")
        elif hop and g == 58:
            a("L_hop3:\ns_cbranch_vccnz L_hopb")
        elif nopf and wq and wq[0][0] in done_inst and nw in (2, 3):
            a("s_nop 1"); ninst += 1
        else:
            ninst -= 1
        ninst += 1
    assert not pend and bar_done and e_done == 2 and v_ok
    print("left of group 0 after the last MFMA:", len(vq), file=sys.stderr)
    if stamps: a("s_memtime s[82:83]\ns_memrealtime s[66:67]")
    if probe: a("s_memrealtime s[74:75]")
    rest = packed(vq)
    if sfirst:
        for t in rest: a(t); ninst += 1
        rest = []
    for key, t in wq:
        while 8 - (ninst - done_inst[key]) > 0:
            if len(rest) > 1: a(rest.pop(0)); ninst += 1
            else:
                gap = 8 - (ninst - done_inst[key]); a(f"s_nop {gap-1}"); ninst += gap
        a(t); ninst += 1
    c("row group 3: handed over through the waves' progress words (read ahead of the data, checked before use)")
    a(f"ds_write_b32 v{CF}, v{CV}")
    for t in rest: a(t)
    if cp2 is not None: a(f"s_setprio {cp2}")
    a(f"L_retry:\nds_read_b32 v{FV}, v{FA}")
    for t in rd(3, 80): a(t)
    a(f"s_waitcnt lgkmcnt(0)\nv_cmp_ne_u32 vcc, 1, v{FV}\ns_cbranch_vccnz L_retry")
    for t in packed(row(3, 80, 112, 120)): a(t)
    if probe in ("zero", "pro", "main", "epi"): spin(*{"zero": ("s70", "s70", 0), "pro": ("s70", "s72", 3), "main": ("s72", "s74", 1), "epi": ("s74", "s76", 3)}[probe], "b")
    if not stamps: a("s_endpgm")
    else:
        a("L_fin:\ns_barrier")
        if P:
            a("s_waitcnt vmcnt(0)\ns_cmp_lg_u32 s19, 64\ns_cbranch_scc1 L_end\nv_mov_b32 v30, 0")
            for r in range(2, 18): a(f"v_writelane_b32 v30, s{62+r}, {r}")
            a("""
            v_lshrrev_b32 v31, 20, v30
            v_and_b32 v30, 0xfffff, v30
            v_sub_u32 v31, v30, v31
            v_and_b32 v32, 63, v0
            s_lshl_b32 s26, s2, 8
            s_add_u32 s26, s26, 0x10000
            v_lshl_add_u32 v32, v32, 2, s26
            s_mov_b64 exec, 0xffffffff
            global_store_dword v32, v30, s[88:89]
            global_store_dword v32, v31, s[88:89] offset:128
            s_mov_b64 exec, -1
            """)
            stamp_end(a, extra=[], vbase=176)
        elif L:
            a("s_waitcnt vmcnt(0)\ns_barrier\ns_cmpk_lg_u32 s19, 64\ns_cbranch_scc1 L_end\ns_waitcnt lgkmcnt(0)")
            if lw:
                for r in (60, 62, 64, 66, 68): a(f"s_sub_u32 s{r}, s{r}, s58")
                a("s_sub_u32 s58, s58, s92")
                stamp_end(a, extra=["s58", "s60", "s62", "s64", "s66", "s68"], vbase=176)
            else:
                for r in (56, 58, 60, 62, 64): a(f"s_sub_u32 s{r}, s{r}, s92")
                stamp_end(a, extra=["s56", "s58", "s60", "s62", "s64"], vbase=176)
        elif E:
            a("s_memtime s[84:85]\ns_waitcnt vmcnt(0)\ns_barrier\ns_cmpk_lg_u32 s19, 0\ns_cbranch_scc1 L_end\ns_waitcnt lgkmcnt(0)")
            for r in (64, 66, 56, 58, 60, 62): a(f"s_sub_u32 s{r}, s84, s{r}")
            stamp_end(a, extra=["s64", "s66", "s56", "s58", "s60", "s62"], vbase=176)
        else:
            a("s_memtime s[84:85]\ns_waitcnt vmcnt(0)\ns_barrier\ns_cmpk_lg_u32 s19, 0x100\ns_cbranch_scc1 L_end\ns_waitcnt lgkmcnt(0)")
            a("s_sub_u32 s80, s80, s92\ns_sub_u32 s82, s82, s92\ns_sub_u32 s84, s84, s92\ns_sub_u32 s66, s66, s64\ns_sub_u32 s64, s64, s90")
            if stamps == "C": a("s_sub_u32 s68, s68, s92\ns_sub_u32 s70, s70, s92")
            stamp_end(a, extra=["s80", "s82", "s84", "s64", "s66"] + (["s68", "s70"] if stamps == "C" else []), vbase=176)
        a("L_end:\ns_endpgm")
    if not nopc:
        c("order of the c-stages after the first (4 bits each) per tile class: spreads the first touch of every L2 line over the CUs")
        a(".type L_tab,@object\nL_tab:")
        for t in (T if T8 else T32):
            p_ = sum(st << (4 * i) for i, st in enumerate(t[1:]))
            a(f".long {p_ & 0xffffffff:#010x}, {p_ >> 32:#010x}")
        a(f".size L_tab, {64 if T8 else 256}\nL_pad:")
        c("(unreachable) keeps the code read above and the instruction prefetcher's run-ahead inside this section")
        a(f".fill (8448 - (. - L_pc)) / 4, 4, 0xbf810000")
    ref = "standalone__batchnorm__prompt.s.ref"
    hdr = open(ref).read().split("; Override")[0] if os.path.exists(ref) else ""
    txt = "\n".join(l for l in a.text().split("\n") if l.strip()) + "\n"
    if rt:
        txt = txt.replace("s_memtime s[56:57]", "s_memrealtime s[56:57]").replace("s_memtime s[58:59]", "s_memrealtime s[58:59]").replace("s_sub_u32 s61, s56, s92", "s_sub_u32 s61, s56, s90\n    s_mul_i32 s61, s61, 10")
    return wrap(txt, 256, 512, LDS, vgpr=224, accum=224, header=hdr)

if __name__ == "__main__":
    import ast
    names = []
    for spec in sys.argv[1:]:
        name, _, kw = spec.partition(":")
        d = {}
        for item in filter(None, kw.split(",")):
            kk, v = item.split("=")
            try: v = ast.literal_eval(v.replace("_", ","))
            except Exception: v = v.replace("+", " ")
            d[kk] = v
        open(name + ".s", "w").write(gen(**d))
        names.append(name + ".s")
    print(" ".join(names))
```

```python
import sys, os
from asmlib import *

SLOT = 41216
WOFF = 130 * 128
NS = 3
PLANE = SLOT
PARM = NS * SLOT
PLANE1 = PARM + 512
FLAG = PLANE1 + 32768
LDS = FLAG + 1024
HAND = PLANE1 + 24576

DOC = """;
;   waves 0-3  stream x and w into a 3-slot LDS ring by LDS-DMA, 64 input channels (one "stage", 41216 B) at a time
;   waves 4-7  wave (kh, nh): 128 rows x 32 columns over half kh of each stage, v_mfma_f32_16x16x32_bf16.
;              Rows are interleaved (tile j = rows 8*i+j), so 10 x fragments feed all 3 taps of 8 row tiles;
;              w fragments come through ds_read_b64_tr_b16.  Rows -1 and 2048 are zero through the buffer range check.
;   Each tile walks the 16 stages in its own order (L_tab), which spreads the cache misses over the CUs (speed only).
; LDS: 3 x 41216 ring | 123648 BN scale/shift | 124160 sums of kh=1 (kh=0: ring slot 1) | 156928 progress words
"""

def build(first, touch):
    when = {st: 0 for st in first}
    for slot, q, st in touch: when[st] = slot
    assert sorted(when) == list(range(16))
    T = []
    for q in range(4):
        mine = {slot: st for slot, qq, st in touch if qq == q}
        mine[0] = first[q]
        order = []
        for slot in range(16):
            if slot in mine: pick = mine[slot]
            else: pick = min((st for st in range(16) if st not in order and st not in mine.values() and when[st] < slot), key=lambda st: (when[st], st))
            order.append(pick)
        assert sorted(order) == list(range(16))
        T.append(order)
    return T

def gen(stamps=False, nto="sc0 sc1 nt", k0=8, k=8, prio=3, bpos=29, sd=3, n1=10, LAM=7, bl=19, ahead=1,
        lprio=0, cpf=1, vper=2, nopf=1, cp2=0, wsp=3, epg=37, wfirst=0, ntm=15, perm='x4567012389bacdef', aodd=None, we=0, wsr=None, wsp_='', col=None, po='wwwxxxxWWW', fl=0, rt=0, sched='zg', xsw=7, wb_=5, pw=0, probe=None, lw=0, xw=0, xv=0, dw=16, sfirst=0, nopc=0, hop=0, one=1, rgap=0, wsp2=3, sd2=3, pafter=0, b64=0, nmap=1, ex04=None, late=16, c8=0):
    a = Asm()
    c = lambda t: a.l.append("    ; " + t)
    P = stamps == "P"
    L = stamps == "L"
    tail = lambda s0, q0, ah=ahead: [(s - ah, (s - s0 + q0) & 3, s) for s in range(s0, 16)]
    swp = lambda T_, pm: T_ + [[pm.get(st, st) for st in t] for t in T_]
    sw02 = {0: 2, 1: 3, 2: 0, 3: 1}
    def zs(cls, ah, a0=(1, 2)):
        return build([0,1,0,1], [(a0[s - 2] if s < 4 else s - ah - (s >= late), 2 * cls[s // 2 - 1] + (s & 1), s) for s in range(2, 16)])
    x2 = {st: st ^ 2 for st in range(16)}
    SCH = {"za": lambda: swp(zs([0,1,0,0,1,1,0], ahead), x2),
         "zb": lambda: swp(zs([0,1,0,0,1,1,0], ahead, (1, 1)), x2),
         "zc": lambda: swp(zs([0,1,1,0,0,1,0], ahead), x2),
         "zd": lambda: swp(zs([0,1,0,1,1,0,1], ahead), x2),
         "zf": lambda: swp(zs([0,1,0,1,1,0,1], ahead, (1, 1)), x2),
         "zg": lambda: swp(zs([0,1,0,1,0,0,1], ahead, (1, 1)), x2),
         "zh": lambda: swp(zs([0,1,1,0,0,1,1], ahead, (1, 1)), x2),
         "ze": lambda: swp(zs([0,1,1,0,1,1,0], ahead), x2),
         "l4": lambda: swp(build([0,1,2,3], tail(4, 0)), {}),
         "l2p": lambda: swp(build([0,1,0,1], [(1, 0, 2), (1, 1, 3), (2, 2, 4), (2, 3, 5)] + tail(6, 0)), sw02),
         "l2q": lambda: swp(build([0,1,0,1], [(1, 0, 2), (1, 1, 3), (2, 2, 4), (3, 3, 5)] + tail(6, 0)), sw02),
         "l2s": lambda: swp(build([0,1,0,1], [(1, 0, 2), (2, 1, 3), (2, 2, 4), (3, 3, 5)] + tail(6, 0)), sw02),
         "l2v": lambda: swp(build([0,1,0,1], [(1, 0, 2), (1, 1, 3)] + tail(4, 2)), sw02),
         "l2w": lambda: swp(build([0,1,0,1], [(1, 0, 2), (2, 1, 3)] + tail(4, 2)), sw02),
         "l2x": lambda: swp(build([0,1,0,1], [(2, 0, 2), (2, 1, 3), (2, 2, 2), (2, 3, 3)] + tail(4, 2)), sw02),
         "l2y": lambda: swp(build([0,1,0,1], [(1, 0, 2), (2, 1, 3)] + tail(4, 2)), {**sw02, 4: 6, 5: 7, 6: 4, 7: 5}),
         "l2z": lambda: swp(build([0,1,0,1], [(1, 0, 2), (2, 1, 3), (3, 2, 4), (4, 3, 5), (5, 0, 6), (6, 1, 7), (7, 0, 8), (8, 1, 9), (9, 2, 10), (10, 3, 11), (11, 2, 12), (12, 3, 13), (13, 0, 14), (14, 1, 15)]), {st: st ^ 2 for st in range(12)}),
         "l2pp": lambda: swp(build([0,1,0,1], [(1, 0, 2), (1, 1, 3)] + [((s & ~1) - ahead, (s - 2) & 3, s) for s in range(4, 16)]), sw02),
         "l2t": lambda: swp(build([0,1,0,1], [(1, 0, 2), (1, 1, 3), (2, 2, 4), (3, 3, 5)] + tail(6, 0)), {**sw02, 4: 8, 5: 9, 6: 10, 7: 11, 8: 4, 9: 5, 10: 6, 11: 7}),
         "l2u": lambda: swp(build([0,1,0,1], [(1, 0, 2), (1, 1, 3), (2, 2, 4), (3, 3, 5)] + tail(6, 0)), {**sw02, 8: 12, 9: 13, 10: 14, 11: 15, 12: 8, 13: 9, 14: 10, 15: 11}),
         "l1c": lambda: swp(build([0,0,0,0], [(1, 2, 1), (1, 3, 1), (1, 0, 2), (1, 1, 3), (3, 2, 4), (3, 3, 5), (4, 2, 6), (5, 3, 7)] + tail(8, 0)), {0: 1, 1: 0, 2: 4, 3: 5, 4: 2, 5: 3}),
         "l1d": lambda: swp(build([0,0,0,0], [(1, 0, 1), (1, 1, 1), (1, 2, 1), (1, 3, 1), (2, 0, 2), (2, 1, 3), (2, 2, 2), (2, 3, 3), (3, 0, 4), (3, 1, 5), (4, 2, 6), (5, 3, 7)] + tail(8, 0)), {0: 1, 1: 0, 2: 4, 3: 5, 4: 2, 5: 3}),
         }
    T = SCH[sched]()
    par = lambda X: (X ^ (X >> 2)) & 1
    T32 = [T[4 * par(X) + q] for X in range(8) for q in range(4)]
    if c8: T32 = [[st ^ (c8 if (i >> 2) & 2 else 0) for st in t] for i, t in enumerate(T32)]
    if ex04:
        Te = SCH[ex04]()
        for X in (0, 4):
            for q in range(4):
                assert Te[4 * par(X) + q][0] == T32[4 * X + q][0]
                T32[4 * X + q] = Te[4 * par(X) + q]
    if perm: T32 = [[int(perm[1:][st], 16) for st in t] for t in T32]
    if perm: T = [[int(perm[1:][st], 16) for st in t] for t in T]
    if stamps: stamp_begin(a); a("s_load_dwordx2 s[88:89], s[0:1], 64")
    if probe: a("s_memrealtime s[70:71]")
    c("---- entry: s[36:51] = x, w, mean, var, g, b, out, dbg.  XCD (wg & 7) owns 8 x 4 tiles of 128 rows x 64 columns")
    a(f"""
    s_load_dwordx16 s[36:51], s[0:1], 0
    v_readfirstlane_b32 s19, v0
    s_cmpk_ge_u32 s2, 0x100
    s_cbranch_scc1 L_end
    s_lshr_b32 s20, s2, 3
    s_and_b32 s21, s20, 7
    s_and_b32 s22, s2, 4
    s_lshl1_add_u32 s23, s22, s21
    {"s_andn2_b32 s24, 3, s2" if nmap == 1 else "s_and_b32 s24, s2, 3"}
    s_lshr_b32 s25, s2, 6
    {"s_lshl2_add_u32 s24, s25, s24" if nmap else "s_lshl2_add_u32 s24, s24, s25"}
    s_lshl_b32 s23, s23, 18
    s_lshl_b32 s24, s24, 7
    """)
    if not nopc: a("s_getpc_b64 s[16:17]")
    a("L_pc:\ns_cmpk_ge_u32 s19, 0x100")
    c("s23 = row tile * 128 * 2048 B, s24 = column tile * 128 B, s19 = first thread id of the wave")
    if nopc == 1:
        a("s_cbranch_scc1 L_cons")
    elif nopc == 2:
        c("waves 4-7 leave for their code only once the pointers are here (their fetch miss must not delay the loaders' fetches)")
        a("s_cbranch_scc0 L_load\ns_waitcnt lgkmcnt(0)\ns_branch L_cons\nL_load:")
    else:
        a("s_cbranch_scc0 L_load")
        c("waves 4-7 (MFMA waves): read 64 B of this kernel's code each, so that it is in L2 before it is fetched")
        CPF = {1: "s_load_dword s3, s[16:17], s26\ns_waitcnt lgkmcnt(0)",
               2: "s_waitcnt lgkmcnt(0)\ns_load_dword s3, s[16:17], s26\ns_waitcnt lgkmcnt(0)",
               3: "v_mov_b32 v1, s26\nglobal_load_dword v2, v1, s[16:17]\ns_waitcnt vmcnt(0) lgkmcnt(0)",
               0: "s_waitcnt lgkmcnt(0)"}[cpf]
        a(f"""
        s_lshl_b32 s26, s20, 8
        s_add_u32 s26, s26, s19
        {CPF}
        s_branch L_cons
        L_load:
        """)
    K = sum(t[0] << (4 * i) for i, t in enumerate(T))
    C8 = "s_and_b32 s26, s2, 2\ns_lshl2_add_u32 s31, s26, s31\n" if c8 else ""
    for X in range(8):
        for q in range(4): assert T32[4 * X + q][0] == T[4 * par(X) + q][0] + (8 if c8 and X & 2 else 0)
    TAB = f"s_lshl2_add_u32 s26, s2, s22\ns_and_b32 s26, s26, 4\ns_or_b32 s26, s29, s26\ns_lshl_b32 s26, s26, 2\ns_lshr_b32 s31, {K:#x}, s26\ns_and_b32 s31, s31, 15\n{C8}s_and_b32 s26, s2, 7\ns_lshl2_add_u32 s29, s26, s29\ns_lshl3_add_u32 s29, s29, L_tab-L_pc"
    T8 = not (ex04 or c8)
    if T8: TAB = f"s_lshl2_add_u32 s26, s2, s22\ns_and_b32 s26, s26, 4\ns_or_b32 s29, s29, s26\ns_lshl_b32 s26, s29, 2\ns_lshr_b32 s31, {K:#x}, s26\ns_and_b32 s31, s31, 15\ns_lshl3_add_u32 s29, s29, L_tab-L_pc"
    if nopc:
        pk = [sum(st << (4 * i) for i, st in enumerate(t)) for t in T]
        lo = [p_ & 0xffffffff for p_ in pk]; hi = [p_ >> 32 for p_ in pk]
        assert hi[:4] == hi[4:]
        dx = [lo[q] ^ lo[q + 4] for q in range(4)]
        TAB = f"s_mov_b32 s54, {lo[0]:#x}\ns_mov_b32 s55, {hi[0]:#x}\n"
        for q in range(1, 4): TAB += f"s_cmp_ge_u32 s29, {q}\ns_cselect_b32 s54, {lo[q]:#x}, s54\ns_cselect_b32 s55, {hi[q]:#x}, s55\n"
        for q in range(4): assert dx[q] == ((lo[q] & ~(lo[q] >> 1) & 0x44444444) >> 1)
        TAB += "s_lshl2_add_u32 s26, s2, s22\ns_bitcmp1_b32 s26, 2\ns_cselect_b32 s26, 0x44444444, 0\ns_and_b32 s26, s26, s54\ns_lshr_b32 s27, s54, 1\ns_andn2_b32 s26, s26, s27\ns_lshr_b32 s26, s26, 1\ns_xor_b32 s54, s54, s26"
    c("---- waves 0-3: LDS-DMA loaders.  v5/v6: x pieces, v7/v8: W pieces (own / partner half), v9: halo rows")
    a(f"""
    v_bfe_u32 v2, v0, 3, 3
    v_and_b32 v3, 7, v0
    v_lshrrev_b32 v4, 1, v2
    v_xor_b32 v5, v3, v4
    s_lshl_b32 s12, s19, 6
    s_add_u32 s26, s12, s23
    v_lshl_add_u32 v5, v5, 4, s26
    v_lshl_add_u32 v5, v2, 14, v5
    {f"s_bitcmp1_b32 s2, {xsw}" if xsw else "s_cmp_lg_u32 s2, s2"}
    s_cselect_b32 s26, 0x20040, 0
    v_xor_b32 v5, s26, v5
    v_xor_b32 v6, 0x20040, v5
    s_lshr_b32 s26, s26, 7
    s_add_u32 s12, s12, s26
    v_and_b32 v4, 2, v2
    v_xor_b32 v7, v4, v3
    s_lshl_b32 s26, s19, 9
    s_add_u32 s26, s26, s24
    v_lshl_add_u32 v7, v7, 4, s26
    v_lshl_add_u32 v7, v2, 11, v7
    s_lshr_b32 s14, s19, 5
    s_bitcmp1_b32 s2, {wb_}
    s_cselect_b32 s26, 0x4040, 0
    s_addc_u32 s14, s14, 0
    v_xor_b32 v7, s26, v7
    v_xor_b32 v8, 0x4040, v7
    s_xor_b32 s15, s14, 1
    s_mulk_i32 s14, 3072
    s_mulk_i32 s15, 3072
    s_addk_i32 s14, {WOFF}
    s_addk_i32 s15, {WOFF}
    v_mul_u32_u24 v9, 7, v2
    v_xor_b32 v9, v9, v3
    s_add_u32 s26, s23, 0x40000
    v_lshl_add_u32 v9, v9, 4, s26
    v_mul_u32_u24 v4, 0x40800, v2
    v_sub_u32 v9, v9, v4
    s_add_u32 s29, s21, s25
    s_and_b32 s29, s29, 3
    {TAB}
    s_lshl_b32 s6, 1, 22
    s_lshl_b32 s7, 1, 17
    s_lshl_b32 s10, 3, 21
    s_mov_b32 s11, s7
    v_cmp_gt_u32 vcc, 64, v0
    v_and_b32 v16, 63, v0
    v_lshl_add_u32 v10, v16, 1, s24
    s_mov_b32 s30, 0
    s_mov_b32 s33, 0
    {"s_memtime s[56:57]" if L else ""}
    s_waitcnt lgkmcnt(0)
    {"s_memtime s[58:59]" if L else ""}
    {"s_memrealtime s[72:73]" if probe in ("ka", "iss", "f9", "f7", "f5", "f0") else ""}
    {"" if nopc else "s_load_dwordx2 s[54:55], s[16:17], s29"}
    """)
    c("one pass = one c-stage s31; s[54:55] = the stages still to come, s30 = pass, s33 = ring slot offset")
    a("L_adv:")
    if nopc: a("s_and_b32 s31, s54, 15")
    a("s_lshl_b32 s32, s31, 17")
    X, W = "s[4:7]", "s[8:11]"
    xp = [(["s12", "s13"][n >> 1], f"buffer_load_dwordx4 v{5 + (n >> 1)}, {X}, s31 offen offset:{(n & 1)*2048} lds") for n in range(4)]
    wa = [("s14", f"buffer_load_dwordx4 v7, {W}, s{[32,34,35][t]} offen offset:{t*1024} lds") for t in range(3)]
    wb = [("s15", f"buffer_load_dwordx4 v8, {W}, s{[32,34,35][t]} offen offset:{t*1024} lds") for t in range(3)]
    pieces = wa + xp + wb
    rec = "s_sub_u32 s60, s56, s58\ns_min_u32 s60, s60, 0xfff\ns_lshl_b32 s60, s60, 20\ns_sub_u32 s61, s56, s92\ns_or_b32 s60, s60, s61\n"
    def bar(n, cond):
        c("previous stage landed (wave 0 has one more load in flight: the halo) -> publish it")
        a(f"""
        {cond}
        s_cbranch_scc0 L_nb{n}
        """)
        if L and n == k0 and not lw: a("s_cmp_lg_u32 s30, 1\ns_cbranch_scc1 L_st0\ns_memtime s[62:63]\nL_st0:")
        a(f"""
        s_waitcnt vmcnt({n+1})
        s_cbranch_vccnz L_b{n}
        s_waitcnt vmcnt({n})
        L_b{n}:
        """)
        if P: a("s_waitcnt lgkmcnt(0)\n" + rec + "s_mov_b32 s61, m0\ns_mov_b32 m0, s30\ns_nop 0\ns_movreld_b32 s62, s60\ns_mov_b32 m0, s61\ns_memtime s[58:59]")
        if L and n == k0 and not lw: a("s_cmp_lg_u32 s30, 1\ns_cbranch_scc1 L_st1\ns_memtime s[64:65]\nL_st1:")
        a("s_barrier")
        if P: a("s_memtime s[56:57]")
        a(f"L_nb{n}:")
    LW = "s_waitcnt vmcnt(9); s_memtime s[62:63]; s_waitcnt vmcnt(7); s_memtime s[64:65]; s_waitcnt vmcnt(5); s_memtime s[66:67]; s_waitcnt vmcnt(0); s_memtime s[68:69]; " if lw else ""
    assert SLOT == 0xa100 and NS == 3
    assert min(k0, k) > 3
    fill = {0: "s_mov_b64 s[8:9], s[38:39]", 3: "s_mov_b64 exec, -1", 5: "s_lshr_b64 s[54:55], s[54:55], 4" if nopc else "s_nop 0", 7: f"s_add_u32 s13, s33, {SLOT}"}
    for n in range(11):
        if n == k0 and k0 == k: bar(n, "s_cmp_ge_u32 s30, 1")
        elif n == k0: bar(n, "s_cmp_eq_u32 s30, 1")
        elif n == k: bar(n, "s_cmp_ge_u32 s30, 2")
        if n == 10: break
        if n == 1: a(f"s_add_u32 s34, s32, {0x200000-1024}\ns_lshl_b32 s31, s31, 7")
        if n == 2: a(f"s_add_u32 s35, s32, {0x400000-2048}\ns_mov_b64 s[4:5], s[36:37]")
        if n == 3:
            a(f"""
            s_cbranch_vccz L_nh
            s_add_u32 m0, s33, 16384
            s_mov_b64 exec, 0xffff
            buffer_load_dwordx4 v9, {X}, s31 offen lds
            L_nh:
            """)
        m, ins = pieces[n]
        if n == 5: a(f"s_xor_b32 m0, m0, 0x400\n{fill[n]}")
        elif n in fill: a(f"s_add_u32 m0, s33, {m}\n{fill[n]}")
        a(ins)
    a(f"""
    s_bitcmp1_b32 s33, 16
    s_cselect_b32 s33, 0, s13
    s_add_u32 s30, s30, 1
    {f"s_cmp_lg_u32 s30, 1; s_cbranch_scc1 L_np; s_waitcnt vmcnt({probe[1] if probe[0] == 'f' else 63}); s_memrealtime s[74:75]; L_np:".replace("; ", chr(10)) if probe in ("iss", "f9", "f7", "f5", "f0") else ""}
    {f"s_cmp_lg_u32 s30, 1; s_cbranch_scc1 L_nt; s_memtime s[60:61]; {LW}L_nt:".replace("; ", chr(10)) if L else ""}
    {"" if nopc else "s_waitcnt lgkmcnt(0); s_and_b32 s31, s54, 15; s_lshr_b64 s[54:55], s[54:55], 4".replace("; ", chr(10))}
    s_cmp_lt_u32 s30, 16
    s_cbranch_scc1 L_adv
    """)
    ER, ER1, PA, O0, FA, FV = 208, 210, 212, 213, 214, 215
    if one and not P:
        a("s_mov_b32 s26, 0xbfb8aa3b\ns_cbranch_vccnz L_par\ns_waitcnt vmcnt(0)\ns_barrier\ns_branch L_ep\nL_par:")
    c("---- behind the last stage: BN parameters of the tile's 64 columns (L2 hits by now)")
    a(f"""
    global_load_ushort v12, v10, s[40:41]
    global_load_ushort v13, v10, s[42:43]
    global_load_ushort v14, v10, s[44:45]
    global_load_ushort v15, v10, s[46:47]
    s_waitcnt vmcnt(4)
    """)
    if P: a("s_waitcnt lgkmcnt(0)\n" + rec + "s_mov_b32 s78, s60\ns_memtime s[58:59]")
    a("s_barrier")
    if P: a("s_memtime s[56:57]\ns_waitcnt lgkmcnt(0)\n" + rec + "s_mov_b32 s79, s60")
    if stamps == "E": a("s_memtime s[64:65]")
    def epi_addr():
        a(f"""
        v_lshlrev_b32 v4, 1, v3
        v_xor_b32 v4, v4, v2
        s_and_b32 s26, s19, 0xc0
        s_lshl_b32 s26, s26, 5
        s_add_u32 s26, s26, {PLANE}
        v_lshl_add_u32 v4, v4, 4, s26
        v_lshl_add_u32 v{ER}, v2, 8, v4
        v_xor_b32 v{ER+1}, 16, v{ER}
        v_add_u32 v{ER1}, {PLANE1-PLANE}, v{ER}
        v_add_u32 v{ER1+1}, {PLANE1-PLANE}, v{ER+1}
        v_lshlrev_b32 v4, 5, v3
        v_add_u32 v{PA}, {PARM}, v4
        v_and_b32 v4, 3, v2
        v_lshrrev_b32 v1, 2, v2
        v_lshl_add_u32 v1, v4, 1, v1
        s_bitcmp1_b32 s19, 6
        s_cselect_b32 s27, 9, 0
        v_xor_b32 v1, s27, v1
        s_and_b32 s26, s19, 0x80
        s_lshl_b32 s26, s26, 4
        s_add_u32 s26, s26, s23
        s_add_u32 s26, s26, s24
        v_lshl_add_u32 v4, v3, 4, s26
        v_lshl_add_u32 v{O0}, v1, 14, v4
        s_mov_b32 s50, 0x400000
        s_mov_b32 s51, 0x20000
        s_mov_b32 s26, 0xbfb8aa3b
        s_movk_i32 s29, 0x3000
        v_lshlrev_b32 v4, 4, v0
        v_add_u32 v4, {HAND-4096}, v4
        ds_write_b128 v4, v[{ER}:{ER+3}]
        ds_write_b64 v4, v[{PA}:{PA+1}] offset:4096
        """)
    PS, PT = 64, 72
    prd = [f"ds_read_b128 v[{PS}:{PS+3}], v{PA}", f"ds_read_b128 v[{PT}:{PT+3}], v{PA} offset:256", f"ds_read_b128 v[{PS+4}:{PS+7}], v{PA} offset:16", f"ds_read_b128 v[{PT+4}:{PT+7}], v{PA} offset:272"]
    def rd(g, y):
        return [f"ds_read_b128 v[{y+8*pl+4*e}:{y+8*pl+4*e+3}], v{(ER1 if pl else ER)+e} offset:{g*8192}" for e in range(2) for pl in range(2)]
    def row(g, y, z, o):
        p = y + 8
        pr = lambda r: f"v[{r}:{r+1}]"
        A = [(f"v_pk_add_f32 {pr(y+2*n)}, {pr(y+2*n)}, {pr(p+2*n)}", [f"v_add_f32 v{y+m}, v{y+m}, v{p+m}" for m in (2*n, 2*n+1)]) for n in range(4)]
        B = [(f"v_pk_fma_f32 {pr(y+2*n)}, {pr(y+2*n)}, {pr(PS+2*n)}, {pr(PT+2*n)}", [f"v_fma_f32 v{y+m}, v{y+m}, v{PS+m}, v{PT+m}" for m in (2*n, 2*n+1)]) for n in range(4)]
        C = [(f"v_pk_fma_f32 {pr(z+2*n)}, {pr(z+2*n)}, s[26:27], s[26:27] op_sel_hi:[1,0,0]", [f"v_fma_f32 v{z+m}, v{z+m}, s26, s26" for m in (2*n, 2*n+1)]) for n in range(4)]
        M = [(f"v_pk_mul_f32 {pr(y+2*n)}, {pr(y+2*n)}, {pr(z+2*n)}", [f"v_mul_f32 v{y+m}, v{y+m}, v{z+m}" for m in (2*n, 2*n+1)]) for n in range(4)]
        E_ = [f"v_exp_f32 v{z+n}, v{y+n}" for n in range(8)]
        Rr = [f"v_rcp_f32 v{z+n}, v{z+n}" for n in range(8)]
        V = [f"v_cvt_pk_bf16_f32 v{o+n}, v{y+2*n}, v{y+2*n+1}" for n in range(4)]
        S = f"buffer_store_dwordx4 v[{o}:{o+3}], v{O0}, s[48:51], {['0', 's27', 's28', 's29'][g]} offen {nto if ntm >> g & 1 else nto.replace(' nt', '')}"
        return [A[0], A[1], B[0], A[2], B[1], E_[0], A[3], E_[1], B[2], E_[2], B[3], E_[3], C[0], E_[4], E_[5], C[1], E_[6], E_[7], C[2], Rr[0], Rr[1], C[3], Rr[2], Rr[3], M[0], Rr[4], Rr[5], M[1], Rr[6], V[0], Rr[7], M[2], V[1], M[3], V[2], V[3], S]
    packed = lambda L_: [t[0] if isinstance(t, tuple) else t for t in L_]
    a(f"s_mov_b32 s26, {PARM}\nv_lshl_add_u32 v17, v16, 2, s26\ns_mov_b32 s26, 0xbfb8aa3b")
    c("scale' = -log2(e) * g / sqrt(var + eps), shift' = -log2(e) * (b - mean * g / sqrt(var + eps))")
    a(f"""
    s_waitcnt vmcnt(0)
    v_lshlrev_b32 v13, 16, v13
    v_add_f32 v13, 0x3727c5ac, v13
    v_rsq_f32 v13, v13
    v_lshlrev_b32 v12, 16, v12
    v_lshlrev_b32 v14, 16, v14
    v_lshlrev_b32 v15, 16, v15
    v_mul_f32 v13, v13, v14
    v_fma_f32 v15, -v12, v13, v15
    v_mul_f32 v13, s26, v13
    v_mul_f32 v15, s26, v15
    ds_write_b32 v17, v13
    ds_write_b32 v17, v15 offset:256
    """)
    E = stamps == "E"
    a("s_waitcnt lgkmcnt(0)\nL_ep:\ns_barrier")
    c("epilogue addresses, left in LDS by the MFMA waves")
    a(f"""
    s_mov_b32 s27, {HAND}
    v_lshl_add_u32 v11, v0, 4, s27
    ds_read_b64 v[{PA}:{PA+1}], v11 offset:4096
    ds_read_b128 v[{ER}:{ER+3}], v11
    s_mov_b32 s50, 0x400000
    s_mov_b32 s51, 0x20000
    s_movk_i32 s27, 0x1000
    s_movk_i32 s28, 0x2000
    """)
    if lprio: a(f"s_setprio {lprio}")
    c("row group 0 published (finished by the MFMA waves), then groups 1 and 2 (finished here)")
    a("s_barrier")
    if E: a("s_memtime s[66:67]")
    a("s_waitcnt lgkmcnt(0)")
    for t in prd: a(t)
    a("s_barrier")
    if E: a("s_memtime s[56:57]")
    for t in rd(1, 80) + rd(2, 96): a(t)
    if lprio: a("s_setprio 0")
    a("s_waitcnt lgkmcnt(0)")
    if E: a("s_memtime s[58:59]")
    for t in packed(row(1, 80, 112, 128)): a(t)
    if E: a("s_memtime s[60:61]")
    for t in packed(row(2, 96, 120, 132))[(-1 if xv else 0):]: a(t)
    if E: a("s_memtime s[62:63]")

    def spin(lo, hi, sh, tag):
        a(f"""
        s_waitcnt vmcnt(0)
        s_memrealtime s[76:77]
        s_waitcnt lgkmcnt(0)
        s_sub_u32 s78, {hi}, {lo}
        s_lshl_b32 s78, s78, {sh}
        s_min_u32 s78, s78, 20000
        L_probe{tag}:
        s_memrealtime s[60:61]
        s_waitcnt lgkmcnt(0)
        s_sub_u32 s62, s60, s76
        s_cmp_lt_u32 s62, s78
        s_cbranch_scc1 L_probe{tag}
        """)
    if probe == "ka": spin("s70", "s72", 4, "a")
    if probe in ("iss", "f9", "f7", "f5", "f0"):
        a("s_cmp_lg_u32 s19, 64\ns_cbranch_scc1 L_end\ns_cmp_lg_u32 s20, 9\ns_cbranch_scc1 L_end")
        spin("s72", "s74", 4, "a")
    if wsr is not None:
        a(f"""
        s_load_dwordx2 s[44:45], s[0:1], 64
        s_mov_b32 s46, 0x10000000
        s_mov_b32 s47, 0x20000
        v_lshlrev_b32 v1, 7, v0
        s_lshl_b32 s48, s2, 17
        s_add_u32 s48, s48, {wsr << 20}
        s_waitcnt lgkmcnt(0)
        """)
        for i in range(4): a(f"buffer_load_dword v2, v1, s[44:47], s48 offen {wsp_}\ns_add_u32 s48, s48, 0x8000")
        a("s_waitcnt vmcnt(0)")
    a("s_branch L_fin" if stamps else "L_end:\ns_endpgm")
    R = 8
    ACC = lambda j, u: (j * 2 + u) * 4
    XF = lambda buf, j: 64 + buf * 64 + (j + 1) * 4
    WF = lambda buf, kk, u: 64 + buf * 64 + 40 + (kk * 2 + u) * 4
    AX = lambda cls: 192 + cls
    AW = lambda u: 195 + u
    EW = lambda u: 197 + u
    ADDR = list(range(192, 197))
    AL, CF, CV = 199, 204, 205
    c("(unreachable) puts the main loop head on a 32-byte boundary")
    a(f".fill (((32 - ((. - {KNAME} + L_cloop - L_cons) & 31)) & 31) / 4), 4, 0xbf810000")
    a("L_cons:")
    if stamps == "C": a("s_memtime s[68:69]")
    if nopc == 1: a("s_waitcnt lgkmcnt(0)")
    c("---- waves 4-7: wave (kh, nh) accumulates 128 rows x 32 columns over c-half kh of every stage")
    if hop:
        c("three of the waves jump ahead and straight back: the fetch pulls those parts of the code into the instruction cache early")
        a("s_mov_b64 vcc, -1\ns_cmpk_eq_u32 s19, 0x140\ns_cbranch_scc1 L_hop1\ns_cmpk_eq_u32 s19, 0x180\ns_cbranch_scc1 L_hop2\ns_cmpk_eq_u32 s19, 0x1c0\ns_cbranch_scc1 L_hop3\nL_hopb:\ns_mov_b64 vcc, 0")
    c("touch the BN parameter lines so that the epilogue's loads hit L2")
    if pw:
        for r in (40, 42, 44, 46):
            a(f"s_load_dword s3, s[{r}:{r+1}], s24\ns_load_dword s3, s[{r}:{r+1}], s24 offset:64")
    else:
        a("""
        s_bitcmp1_b32 s19, 6
        s_cselect_b64 s[4:5], s[42:43], s[40:41]
        s_cselect_b64 s[6:7], s[46:47], s[44:45]
        s_bitcmp1_b32 s19, 7
        s_cselect_b64 s[4:5], s[6:7], s[4:5]
        s_load_dword s3, s[4:5], s24
        s_load_dword s3, s[4:5], s24 offset:64
        """)
    c("lane (i, G): tile j holds row 8*pi(i)+j; x fragment f = rows 8*pi+f (f = -1..8) serves tap k of tile j = f-k+1")
    a(f"""
    v_and_b32 v10, 15, v0
    v_bfe_u32 v11, v0, 4, 2
    v_lshrrev_b32 v1, 2, v10
    v_lshrrev_b32 v2, 3, v10
    v_xor_b32 v1, v1, v2
    v_and_b32 v1, 1, v1
    v_and_b32 v2, 3, v10
    v_lshl_add_u32 v1, v2, 1, v1
    v_and_or_b32 v1, v10, 8, v1
    v_bfe_u32 v12, v0, 7, 1
    v_bfe_u32 v13, v0, 6, 1
    v_lshl_add_u32 v2, v12, 2, v11
    v_lshrrev_b32 v4, 1, v1
    v_xor_b32 v4, v4, v2
    v_lshlrev_b32 v4, 4, v4
    v_lshl_add_u32 v{AX(1)}, v1, 7, v4
    v_add_u32 v3, -1, v1
    v_bfe_u32 v4, v3, 1, 3
    v_xor_b32 v4, v4, v2
    v_lshlrev_b32 v4, 4, v4
    v_ashrrev_i32 v5, 31, v3
    v_and_b32 v5, 18, v5
    v_add_u32 v3, 0x70, v3
    v_add_u32 v3, v3, v5
    v_lshl_add_u32 v{AX(0)}, v3, 7, v4
    v_add_u32 v3, 1, v1
    v_bfe_u32 v4, v3, 1, 3
    v_xor_b32 v4, v4, v2
    v_lshlrev_b32 v4, 4, v4
    v_and_b32 v5, 16, v3
    v_and_b32 v3, 15, v3
    v_lshl_add_u32 v3, v5, 3, v3
    v_lshl_add_u32 v{AX(2)}, v3, 7, v4
    v_mul_u32_u24 v2, 3072, v2
    v_bfe_u32 v4, v0, 2, 2
    v_lshl_add_u32 v2, v4, 7, v2
    v_and_b32 v5, 3, v0
    v_lshl_add_u32 v2, v5, 3, v2
    v_and_b32 v3, 1, v11
    v_xor_b32 v3, v3, v13
    v_lshrrev_b32 v4, 1, v4
    v_lshl_add_u32 v3, v3, 1, v4
    v_lshl_add_u32 v2, v3, 5, v2
    v_add_u32 v{AW(0)}, {WOFF}, v2
    v_xor_b32 v{AW(1)}, 32, v{AW(0)}
    v_lshl_add_u32 v2, v13, 3, v11
    v_and_b32 v3, 7, v10
    v_xor_b32 v2, v2, v3
    v_lshlrev_b32 v2, 4, v2
    v_lshl_add_u32 v2, v10, 8, v2
    v_mul_u32_u24 v3, {PLANE1-PLANE}, v12
    v_add_u32 v2, v2, v3
    v_add_u32 v{EW(0)}, {PLANE}, v2
    v_xor_b32 v{EW(1)}, 64, v{EW(0)}
    v_lshlrev_b32 v2, 2, v0
    v_add_u32 v{CF}, {FLAG-1024}, v2
    v_mov_b32 v{CV}, 1
    v_and_b32 v4, 3, v0
    v_mul_u32_u24 v4, 0x104, v4
    v_add_u32 v{FA}, {FLAG}, v4
    v_bfe_u32 v2, v0, 3, 3
    v_and_b32 v3, 7, v0
    """)
    epi_addr()
    for n_, r in enumerate(ADDR): a(f"v_mov_b32 v{AL+n_}, v{r}")
    for r in range(0, 64, 2): a(f"v_mov_b64 v[{r}:{r+1}], 0")
    a(f"ds_write_b32 v{CF}, v0\ns_mov_b32 s30, 0\ns_mov_b32 s33, 0\ns_mov_b32 s35, {SLOT}")
    if prio: a(f"s_setprio {prio}")
    if pw: a("s_waitcnt lgkmcnt(0)")
    if stamps == "C": a("s_memtime s[70:71]")
    tiles = [(j, 0) for j in range(4)] + [(j, 1) for j in range(4)] + [(j, 1) for j in range(4, 8)] + [(j, 0) for j in range(4, 8)]
    def chain(seq):
        out = []
        for n_, (b, j, u) in enumerate(seq): out += [(b, kk, u, j) for kk in ((2, 1, 0) if n_ & 1 else (0, 1, 2))]
        return out
    def mf(b, kk, u, j):
        return f"v_mfma_f32_16x16x32_bf16 v[{ACC(j,u)}:{ACC(j,u)+3}], v[{WF(b,kk,u)}:{WF(b,kk,u)+3}], v[{XF(b,j+kk-1)}:{XF(b,j+kk-1)+3}], v[{ACC(j,u)}:{ACC(j,u)+3}]"
    def reads(buf):
        Lr = []; seen = set()
        for n_, (_, kk, u, j) in enumerate(chain([(buf, j, u) for j, u in tiles])):
            if ("w", kk, u) not in seen:
                seen.add(("w", kk, u)); r = WF(buf, kk, u)
                Lr += [(f"ds_read_b64_tr_b16 v[{r+2*e}:{r+2*e+1}], v{AW(u)} offset:{kk*1024 + e*512}", n_) for e in range(2)]
            f = j + kk - 1
            if ("x", f) not in seen:
                seen.add(("x", f)); r = XF(buf, f)
                cls = 0 if f == -1 else (2 if f == R else 1)
                Lr.append((f"ds_read_b128 v[{r}:{r+3}], v{AX(cls)} offset:{f*2048 if cls == 1 else 0}", n_))
        return Lr
    upd = ["s_add_u32 s33, s33, 1", "s_cmp_eq_u32 s33, 3", f"s_cselect_b32 s34, {(-2*SLOT) & 0xffffffff:#x}, s35", "s_cselect_b32 s33, 0, s33"] + [f"v_add_u32 v{r}, s34, v{r}" for r in ADDR]
    NE = min(22, 45 - bpos)
    WAITS = [-2, 2, 10, 23]
    need = [n_ for _, n_ in reads(0)]
    covered = lambda wi: 22 if wi == len(WAITS) - 1 else sum(1 for n_ in need if n_ <= WAITS[wi + 1])
    def step(buf):
        late = [t for t, _ in reads(buf)[NE:]]
        early = [t for t, _ in reads(buf ^ 1)[:NE]]
        misc = list(upd) + (["s_add_u32 s30, s30, 1", "s_cmp_lt_u32 s30, 7"] if buf else [])
        nr = NE
        for g, m in enumerate(chain([(buf, j, u) for j, u in tiles])):
            a(mf(*m))
            if g in WAITS:
                assert nr >= covered(WAITS.index(g))
                a(f"s_waitcnt lgkmcnt({nr - covered(WAITS.index(g))})")
            elif late: a(late.pop(0)); nr += 1
            elif g < bpos:
                if misc: a(misc.pop(0))
                elif hop and buf == 0 and g == 26: a("L_hop1:\ns_cbranch_vccnz L_hopb")
            elif g == bpos:
                assert not misc and g > WAITS[-1]
                a("s_barrier")
            elif early: a(early.pop(0))
            elif g == 46: a(f"s_waitcnt lgkmcnt({NE - covered(0)})")
            elif g == 47 and buf: a("s_cbranch_scc1 L_cloop")
    a("s_barrier")
    if stamps: a("s_memtime s[80:81]\ns_memrealtime s[64:65]")
    if probe: a("s_memrealtime s[72:73]")
    for t, _ in reads(0)[:NE]: a(t)
    a(f"s_waitcnt lgkmcnt({NE - covered(0)})")
    c("main loop: two stages per pass; the barrier publishes the next stage and frees the slot just read")
    a("L_cloop:")
    step(0)
    step(1)
    c("last two stages merged so that the row groups finish one after the other; sums go to LDS as they finish")
    seq = [(0, j, u) for j, u in tiles[:n1]]
    for g in range(4):
        u0 = g & 1
        for j, u in ((2*g, u0), (2*g+1, u0), (2*g+1, u0 ^ 1), (2*g, u0 ^ 1)):
            if (j, u) not in tiles[:n1]: seq.append((0, j, u))
            seq.append((1, j, u))
    fm = chain(seq)
    operands = lambda b, kk, u, j: {XF(b, j + kk - 1), WF(b, kk, u), WF(b, kk, u) + 2}
    dst = lambda text: int(text.split("v[")[1].split(":")[0])
    first_use = {}
    for g, m in enumerate(fm):
        for r in operands(*m): first_use.setdefault(r, g)
    r15 = [t for t, _ in reads(1)]
    for n_, r in enumerate(ADDR): r15 = [t.replace(f", v{r} ", f", v{AL+n_} ") for t in r15]
    pend = sorted([(first_use[dst(t)], 0, t) for t, _ in reads(0)[NE:]] + [(first_use[dst(t)], 1, t) for t in r15], key=lambda e: e[0])
    ops = [(dst(t), -2 - NE + n_) for n_, (t, _) in enumerate(reads(0)[:NE])]
    ncov = covered(0)
    bgap = 3 * n1 - bl
    wq = [((j, u), f"ds_write_b128 v{EW(u)}, v[{ACC(j,u)}:{ACC(j,u)+3}] offset:{j*4096}") for b, j, u in seq if b == 1]
    if xw: wq = [(k_, t.replace("ds_write_b128", "ds_write_b32").split(", v[")[0] + f", v{ACC(*k_)} offset:" + t.split("offset:")[1]) for k_, t in wq]
    WM = 1
    if b64:
        WM = 2
        wq = [((j, u), f"ds_write_b64 v{EW(u)}, v[{ACC(j,u)+2*h}:{ACC(j,u)+2*h+1}] offset:{j*4096+8*h}") for b, j, u in seq if b == 1 for h in range(2)]
        dw = dw * 2
    last_use = {}
    for g, m in enumerate(fm):
        for r in operands(*m): last_use[r] = g
    pfree = max(last_use[XF(0, f)] for f in (-1, 0, 1, 2)) + 1
    assert PS == XF(0, -1)
    Z0, OUT0 = XF(1, -1), 216
    zfree = max(last_use[XF(1, f)] for f in (-1, 0)) + 1
    ppend = list(prd); gpend = rd(0, 0); ep_done = False
    vq = []
    for t in row(0, 0, Z0, OUT0): vq.append(t)
    v_ok = False; g_last = None
    ninst = 0; done_inst = {}
    bar_done = False; nw = 0; lastw = -9
    ev = []
    e_done = 0
    for g, m in enumerate(fm):
        a(mf(*m)); ninst += 1
        if m[0] == 1 and g % 3 == 2: done_inst[(m[3], m[2])] = ninst
        nxt = operands(*fm[g + 1]) if g + 1 < len(fm) else set()
        unc = [n_ for n_, (r, _) in enumerate(ops) if n_ >= ncov and r in nxt]
        assert all(r in [o[0] for o in ops] for r in nxt), ("operand never read", g)
        ready = [e for e in pend if e[1] == 0 or bar_done]
        wrote = False
        if unc:
            cc = max(unc) + 1
            while cc < len(ops) and ops[cc][1] <= g - LAM: cc += 1
            if ops[max(unc)][1] > g - LAM: print("note: short read distance at gap", g, g - ops[max(unc)][1], file=sys.stderr)
            a(f"s_waitcnt lgkmcnt({min(15, len(ops) - cc)})"); ncov = cc
        elif wfirst and wq and wq[0][0] in done_inst and ninst - done_inst[wq[0][0]] >= 8 and g - lastw >= wsp:
            a(wq.pop(0)[1]); ops.append((None, g)); nw += 1; lastw = g
            if nw in (4, 12): ev.append([len(ops), 0])
        elif ev and ev[0][1] == 1:
            assert ep_done
            a("s_barrier"); ev.pop(0); e_done += 1
        elif ev and ops[ev[0][0] - 1][1] <= g - (sd2 if e_done else sd):
            a(f"s_waitcnt lgkmcnt({len(ops) - ev[0][0]})"); ev[0][1] = 1; ncov = max(ncov, ev[0][0])
        elif e_done and gpend:
            assert g >= pfree
            a(gpend.pop(0)); ops.append((None, g)); g_last = len(ops)
        elif wq and nw < dw and (nw < 12 * WM or e_done == 2) and wq[0][0] in done_inst and ninst - done_inst[wq[0][0]] >= 8 and g - lastw >= (wsp if nw < 4 * WM else wsp2):
            assert nw < 12 * WM or e_done == 2
            a(wq.pop(0)[1]); ops.append((None, g)); nw += 1; lastw = g
            if nw in (4 * WM, 12 * WM): ev.append([len(ops), 0])
        elif not bar_done and g >= bgap:
            a("s_barrier"); bar_done = True
        elif bar_done and not ep_done and g >= epg:
            a("s_barrier"); ep_done = True
        elif ready and (g - lastw > rgap or ready[0][0] - g <= LAM + 2):
            pend.remove(ready[0]); a(ready[0][2]); ops.append((dst(ready[0][2]), g))
        elif ppend and ep_done and g >= pfree and g - lastw > rgap and (not pafter or not gpend):
            a(ppend.pop(0)); ops.append((None, g)); g_last = len(ops)
        elif not v_ok and not gpend and not ppend and ops[g_last - 1][1] <= g - LAM + 1:
            assert g >= zfree
            a(f"s_waitcnt lgkmcnt({len(ops) - g_last})"); ncov = max(ncov, g_last); v_ok = True
        elif v_ok and len(vq) > 1 and vper:
            t = vq.pop(0)
            if isinstance(t, tuple):
                a(t[1][0])
                if vper == 2: a(t[1][1]); ninst += 1
                else: vq.insert(0, t[1][1])
            else:
                a(t)
                if vper == 2 and "cvt" in t and "cvt" in str(vq[0]): a(vq.pop(0)); ninst += 1
        elif hop and g == 8:
            a("L_hop2:\ns_cbranch_vccnz L_hopb")
        elif hop and g == 58:
            a("L_hop3:\ns_cbranch_vccnz L_hopb")
        elif nopf and wq and wq[0][0] in done_inst and nw in (2, 3):
            a("s_nop 1"); ninst += 1
        else:
            ninst -= 1
        ninst += 1
    assert not pend and bar_done and e_done == 2 and v_ok
    print("left of group 0 after the last MFMA:", len(vq), file=sys.stderr)
    if stamps: a("s_memtime s[82:83]\ns_memrealtime s[66:67]")
    if probe: a("s_memrealtime s[74:75]")
    rest = packed(vq)
    if sfirst:
        for t in rest: a(t); ninst += 1
        rest = []
    for key, t in wq:
        while 8 - (ninst - done_inst[key]) > 0:
            if len(rest) > 1: a(rest.pop(0)); ninst += 1
            else:
                gap = 8 - (ninst - done_inst[key]); a(f"s_nop {gap-1}"); ninst += gap
        a(t); ninst += 1
    c("row group 3: handed over through the waves' progress words (read ahead of the data, checked before use)")
    a(f"ds_write_b32 v{CF}, v{CV}")
    for t in rest: a(t)
    if cp2 is not None: a(f"s_setprio {cp2}")
    a(f"L_retry:\nds_read_b32 v{FV}, v{FA}")
    for t in rd(3, 80): a(t)
    a(f"s_waitcnt lgkmcnt(0)\nv_cmp_ne_u32 vcc, 1, v{FV}\ns_cbranch_vccnz L_retry")
    for t in packed(row(3, 80, 112, 120)): a(t)
    if probe in ("all", "fix", "zero", "pro", "main", "epi"): spin(*{"all": ("s70", "s76", 3), "fix": ("0", "2000", 0), "zero": ("s70", "s70", 0), "pro": ("s70", "s72", 3), "main": ("s72", "s74", 1), "epi": ("s74", "s76", 3)}[probe], "b")
    if not stamps: a("s_endpgm")
    else:
        a("L_fin:\ns_barrier")
        if P:
            a("s_waitcnt vmcnt(0)\ns_cmp_lg_u32 s19, 64\ns_cbranch_scc1 L_end\nv_mov_b32 v30, 0")
            for r in range(2, 18): a(f"v_writelane_b32 v30, s{62+r}, {r}")
            a("""
            v_lshrrev_b32 v31, 20, v30
            v_and_b32 v30, 0xfffff, v30
            v_sub_u32 v31, v30, v31
            v_and_b32 v32, 63, v0
            s_lshl_b32 s26, s2, 8
            s_add_u32 s26, s26, 0x10000
            v_lshl_add_u32 v32, v32, 2, s26
            s_mov_b64 exec, 0xffffffff
            global_store_dword v32, v30, s[88:89]
            global_store_dword v32, v31, s[88:89] offset:128
            s_mov_b64 exec, -1
            """)
            stamp_end(a, extra=[], vbase=176)
        elif L:
            a("s_waitcnt vmcnt(0)\ns_barrier\ns_cmpk_lg_u32 s19, 64\ns_cbranch_scc1 L_end\ns_waitcnt lgkmcnt(0)")
            if lw:
                for r in (60, 62, 64, 66, 68): a(f"s_sub_u32 s{r}, s{r}, s58")
                a("s_sub_u32 s58, s58, s92")
                stamp_end(a, extra=["s58", "s60", "s62", "s64", "s66", "s68"], vbase=176)
            else:
                for r in (56, 58, 60, 62, 64): a(f"s_sub_u32 s{r}, s{r}, s92")
                stamp_end(a, extra=["s56", "s58", "s60", "s62", "s64"], vbase=176)
        elif E:
            a("s_memtime s[84:85]\ns_waitcnt vmcnt(0)\ns_barrier\ns_cmpk_lg_u32 s19, 0\ns_cbranch_scc1 L_end\ns_waitcnt lgkmcnt(0)")
            for r in (64, 66, 56, 58, 60, 62): a(f"s_sub_u32 s{r}, s84, s{r}")
            stamp_end(a, extra=["s64", "s66", "s56", "s58", "s60", "s62"], vbase=176)
        else:
            a("s_memtime s[84:85]\ns_waitcnt vmcnt(0)\ns_barrier\ns_cmpk_lg_u32 s19, 0x100\ns_cbranch_scc1 L_end\ns_waitcnt lgkmcnt(0)")
            a("s_sub_u32 s80, s80, s92\ns_sub_u32 s82, s82, s92\ns_sub_u32 s84, s84, s92\ns_sub_u32 s66, s66, s64\ns_sub_u32 s64, s64, s90")
            if stamps == "C": a("s_sub_u32 s68, s68, s92\ns_sub_u32 s70, s70, s92")
            stamp_end(a, extra=["s80", "s82", "s84", "s64", "s66"] + (["s68", "s70"] if stamps == "C" else []), vbase=176)
        a("L_end:\ns_endpgm")
    if not nopc:
        c("order of the c-stages after the first (4 bits each) per tile class: spreads the first touch of every L2 line over the CUs")
        a(".type L_tab,@object\nL_tab:")
        for t in (T if T8 else T32):
            p_ = sum(st << (4 * i) for i, st in enumerate(t[1:]))
            a(f".long {p_ & 0xffffffff:#010x}, {p_ >> 32:#010x}")
        a(f".size L_tab, {64 if T8 else 256}\nL_pad:")
        c("(unreachable) keeps the code read above and the instruction prefetcher's run-ahead inside this section")
        a(f".fill (8448 - (. - L_pc)) / 4, 4, 0xbf810000")
    ref = "standalone__batchnorm__prompt.s.ref"
    hdr = open(ref).read().split("; Override")[0] if os.path.exists(ref) else ""
    hdr += DOC
    txt = "\n".join(l for l in a.text().split("\n") if l.strip()) + "\n"
    if rt:
        txt = txt.replace("s_memtime s[56:57]", "s_memrealtime s[56:57]").replace("s_memtime s[58:59]", "s_memrealtime s[58:59]").replace("s_sub_u32 s61, s56, s92", "s_sub_u32 s61, s56, s90\n    s_mul_i32 s61, s61, 10")
    return wrap(txt, 256, 512, LDS, vgpr=224, accum=224, header=hdr)

if __name__ == "__main__":
    import ast
    names = []
    for spec in sys.argv[1:]:
        name, _, kw = spec.partition(":")
        d = {}
        for item in filter(None, kw.split(",")):
            kk, v = item.split("=")
            try: v = ast.literal_eval(v.replace("_", ","))
            except Exception: v = v.replace("+", " ")
            d[kk] = v
        open(name + ".s", "w").write(gen(**d))
        names.append(name + ".s")
    print(" ".join(names))
```
